```python
import torch

def _softmax(x, axis=-1):
    return torch.softmax(x, dim=axis)

def _gelu(x):
    return torch.nn.functional.gelu(x, approximate='tanh')

def _silu(x):
    return torch.nn.functional.silu(x)

def _sigmoid(x):
    return torch.sigmoid(x)

def _layernorm(x, axis=-1, eps=1e-05):
    m = x.mean(dim=axis, keepdim=True)
    v = x.var(dim=axis, keepdim=True, unbiased=False)
    return (x - m) / torch.sqrt(v + eps)

def _scatter_add(tgt, idx, src, axis=0):
    return tgt.clone().index_add_(axis, idx, src)

def _segment_sum(src, seg, n):
    out = torch.zeros((n,) + src.shape[1:], dtype=src.dtype)
    return out.index_add_(0, seg, src)

def _pad(x, pw):
    flat = tuple((v for pair in reversed(pw) for v in pair))
    return torch.nn.functional.pad(x, flat)
kernel_name = 'adaLN_cond__spectral_fnet__moe_arch_mod__prompt'

def setup_inputs():

    _w = lambda a: (lambda t: t.to(torch.bfloat16) if t.is_floating_point() else t)(torch.as_tensor(a))

    def _A_setup():
        B, S, D = (1, 2048, 512)
        ns = torch.arange(S)[:, None] * torch.arange(S)[None, :]
        nd = torch.arange(D)[:, None] * torch.arange(D)[None, :]
        Ws_re = torch.cos(-2.0 * torch.pi * ns / S).to(float)
        Ws_im = torch.sin(-2.0 * torch.pi * ns / S).to(float)
        Wd_re = torch.cos(-2.0 * torch.pi * nd / D).to(float)
        Wd_im = torch.sin(-2.0 * torch.pi * nd / D).to(float)
        return {'x': _w((lambda *s: torch.randn(*s, dtype=torch.bfloat16) * 0.05)(B, S, D)), 'dft_seq_re': _w(Ws_re), 'dft_seq_im': _w(Ws_im), 'dft_hid_re': _w(Wd_re), 'dft_hid_im': _w(Wd_im)}
    _A_in = _A_setup()

    def _B_setup():
        B, S, D, F, C = (1, 2048, 512, 1792, 2)
        return {'x': _w((lambda *s: torch.randn(*s, dtype=torch.bfloat16) * 0.05)(B, S, D)), 'w_r': _w((lambda *s: torch.randn(*s, dtype=torch.bfloat16) * 3.2)(D)), 'w_gate': _w((lambda *s: torch.randn(*s, dtype=torch.bfloat16) * 0.8)(D, F)), 'w_up': _w((lambda *s: torch.randn(*s, dtype=torch.bfloat16) * 0.8)(D, F)), 'w_down': _w((lambda *s: torch.randn(*s, dtype=torch.bfloat16) * 0.8)(F, D))}
    _B_in = _B_setup()
    return {'A_x': _A_in['x'], 'A_dft_seq_re': _A_in['dft_seq_re'], 'A_dft_seq_im': _A_in['dft_seq_im'], 'A_dft_hid_re': _A_in['dft_hid_re'], 'A_dft_hid_im': _A_in['dft_hid_im'], 'B_x': _B_in['x'], 'B_w_r': _B_in['w_r'], 'B_w_gate': _B_in['w_gate'], 'B_w_up': _B_in['w_up'], 'B_w_down': _B_in['w_down'], 'c': _w((lambda *s: torch.randn(*s, dtype=torch.bfloat16) * 0.1)(1, 512) * 8.0), 'w_mod': _w((lambda *s: torch.randn(*s, dtype=torch.bfloat16) * 0.1)(512, 6 * 512) * 512 ** (-0.5) * 8.0)}

def reference(A_x, A_dft_seq_re, A_dft_seq_im, A_dft_hid_re, A_dft_hid_im, B_x, B_w_r, B_w_gate, B_w_up, B_w_down, c, w_mod):

    def _A_ref(x, dft_seq_re, dft_seq_im, dft_hid_re, dft_hid_im):
        a = torch.einsum('bsd,ed->bse', x, dft_hid_re)
        b = torch.einsum('bsd,ed->bse', x, dft_hid_im)
        y = torch.einsum('ts,bse->bte', dft_seq_re, a) - torch.einsum('ts,bse->bte', dft_seq_im, b)
        return y

    def _B_ref(x, w_r, w_gate, w_up, w_down):
        B, S, D = x.shape
        C = 2
        r = x @ w_r
        idx = torch.argsort(-r, axis=-1)[:, :C]
        idx_e = (lambda x, n, axis: torch.repeat_interleave(x, n, dim=axis))(idx.reshape(B, C, 1), D, axis=2)
        x_sel = (lambda x, i, axis: torch.take_along_dim(x, i, dim=axis))(x, idx_e, axis=1)
        g = _silu(x_sel @ w_gate)
        u = x_sel @ w_up
        y = g * u @ w_down
        r_sel = _sigmoid((lambda x, i, axis: torch.take_along_dim(x, i, dim=axis))(r, idx, axis=1))
        y = y * r_sel.reshape(B, C, 1)
        b_off = (torch.arange(B) * S).reshape(B, 1)
        flat_idx = (idx + b_off).reshape(B * C)
        zero = (x * 0.0).reshape(B * S, D)
        upd = _scatter_add(zero, flat_idx, y.reshape(B * C, D), axis=0)
        return x + upd.reshape(B, S, D)
    x = A_x
    mod = (_silu(c) @ w_mod).reshape(c.shape[0], 6, 1, -1)
    sa, ca, ga, sb, cb, gb = (mod[:, 0].clone(), mod[:, 1].clone(), mod[:, 2].clone(), mod[:, 3].clone(), mod[:, 4].clone(), mod[:, 5].clone())
    h = _layernorm(x, axis=-1) * (1 + ca) + sa
    x = x + ga * _A_ref(h, A_dft_seq_re, A_dft_seq_im, A_dft_hid_re, A_dft_hid_im)
    h = _layernorm(x, axis=-1) * (1 + cb) + sb
    x = x + gb * _B_ref(h, B_w_r, B_w_gate, B_w_up, B_w_down)
    return x
```

```python
import re
import struct
import copy

REG_RE = re.compile(r'^(-|abs\()?([vsa])(?:(\d+)|\[(\d+):(\d+)\])\)?$')
TRANS = ('v_exp_f32', 'v_log_f32', 'v_rcp_f32', 'v_rsq_f32', 'v_sqrt_f32', 'v_sin_f32', 'v_cos_f32')


def f2u(x):
    return struct.unpack('<I', struct.pack('<f', x))[0]


def lit(x):
    return '0x%08x' % f2u(x)


def vr(b, n=1):
    return 'v%d' % b if n == 1 else 'v[%d:%d]' % (b, b + n - 1)


def sr(b, n=1):
    return 's%d' % b if n == 1 else 's[%d:%d]' % (b, b + n - 1)


def regs_of(op):
    op = op.strip()
    if op == 'vcc':
        return {('s', 106), ('s', 107)}
    if op == 'exec':
        return {('s', 126), ('s', 127)}
    if op == 'm0':
        return {('s', 124)}
    m = REG_RE.match(op)
    if not m:
        return set()
    k = m.group(2)
    if m.group(3) is not None:
        return {(k, int(m.group(3)))}
    return {(k, i) for i in range(int(m.group(4)), int(m.group(5)) + 1)}


def split_ops(rest):
    ops, depth, cur = [], 0, ''
    for ch in rest:
        if ch in '[(':
            depth += 1
        if ch in '])':
            depth -= 1
        if ch == ',' and depth == 0:
            ops.append(cur.strip())
            cur = ''
        else:
            cur += ch
    if cur.strip():
        ops.append(cur.strip())
    mods = ''
    if ops:
        last = ops[-1].split(None, 1)
        ops[-1] = last[0]
        mods = last[1] if len(last) > 1 else ''
    return ops, mods


class Ins:
    def __init__(self, text):
        self.text = text
        p = text.split(None, 1)
        self.op = op = p[0]
        self.ops, self.mods = split_ops(p[1]) if len(p) > 1 else ([], '')
        ops = self.ops
        R = [regs_of(o) for o in ops]
        self.wr, self.rd = set(), set()
        self.cls = 'other'
        self.srcc = set()
        self.srcab = set()
        self.passes = 0
        self.store_data = set()
        self.is_dpp = '_dpp' in op
        self.is_trans = any(op.startswith(t) for t in TRANS)
        self.is_dot = op.startswith('v_dot')
        self.is_sdwa = '_sdwa' in op
        allr = set().union(*R) if R else set()
        if op.startswith('v_mfma'):
            self.cls = 'mfma'
            self.wr = R[0]
            self.srcab = R[1] | R[2]
            self.srcc = R[3]
            self.rd = self.srcab | self.srcc
            self.passes = 8 if '32x32' in op else 4
        elif op.startswith('v_'):
            self.cls = 'valu'
            if op.startswith(('v_swap', 'v_permlane16_swap', 'v_permlane32_swap')):
                self.wr = allr
                self.rd = allr
            elif op.startswith(('v_add_co', 'v_sub_co', 'v_addc_co', 'v_subb_co')):
                self.wr = R[0] | R[1]
                self.rd = set().union(*R[2:])
            elif op == 'v_nop':
                pass
            else:
                self.wr = R[0]
                self.rd = set().union(*R[1:]) if len(R) > 1 else set()
                if op.startswith(('v_fmac', 'v_dot2c', 'v_writelane')) or self.is_dpp:
                    self.rd |= R[0]
                if op.startswith('v_cmpx'):
                    self.wr |= regs_of('exec')
        elif op.startswith(('buffer_', 'global_')):
            self.cls = 'vmem'
            if op in ('buffer_inv', 'buffer_wbl2'):
                pass
            elif '_load' in op:
                if re.search(r'\blds\b', self.mods) or '_lds_' in op:
                    self.rd = allr | regs_of('m0')
                    self.lds_dma = True
                else:
                    self.wr = R[0]
                    self.rd = set().union(*R[1:])
                    if 'd16' in op:
                        self.rd |= R[0]
            elif '_atomic' in op:
                self.rd = allr
                if 'sc0' in self.mods:
                    self.wr = R[0]
            else:
                self.rd = allr
                if 'x4' in op or 'x3' in op:
                    self.store_data = R[0] if op.startswith('buffer_') else R[1]
        elif op.startswith('ds_'):
            self.cls = 'ds'
            if op.startswith(('ds_read', 'ds_bpermute', 'ds_permute', 'ds_swizzle')) or '_rtn' in op:
                self.wr = R[0]
                self.rd = set().union(*R[1:])
            else:
                self.rd = allr
        elif op.startswith(('s_load', 's_buffer_load', 's_memtime', 's_memrealtime')):
            self.cls = 'smem'
            self.wr = R[0]
            self.rd = set().union(*R[1:]) if len(R) > 1 else set()
        elif op.startswith('s_'):
            self.cls = 'salu'
            if op.startswith(('s_cmp', 's_bitcmp', 's_cbranch', 's_branch', 's_nop', 's_waitcnt', 's_barrier',
                              's_endpgm', 's_sleep', 's_setprio')):
                self.rd = allr
            else:
                self.wr = R[0]
                self.rd = set().union(*R[1:]) if len(R) > 1 else set()
                if 'saveexec' in op:
                    self.wr |= regs_of('exec')
        self.states = 1
        if op == 's_nop':
            self.states = int(ops[0], 0) + 1


def V(s):
    return {r for r in s if r[0] in 'va'}


def S(s):
    return {r for r in s if r[0] == 's'}


def need(prod, cons):
    n = 0
    touch = cons.rd | cons.wr
    if prod.cls == 'valu':
        wv, ws = V(prod.wr), S(prod.wr)
        if cons.cls == 'mfma' and wv & cons.rd:
            n = max(n, 3 if prod.is_dot else 2)
        if cons.cls == 'valu':
            if cons.is_dpp and wv & cons.rd:
                n = max(n, 2)
            if cons.op.startswith('v_permlane') and wv & cons.rd:
                n = max(n, 2)
            if cons.op.startswith(('v_readlane', 'v_readfirstlane')) and wv & cons.rd:
                n = max(n, 1)
            if ws & cons.rd:
                n = max(n, 4 if cons.op.startswith(('v_readlane', 'v_writelane')) else 2)
            if prod.is_sdwa and wv & touch:
                n = max(n, 1)
        if prod.is_trans and wv & cons.rd:
            n = max(n, 1)
        if prod.is_dot and wv & touch:
            same_c = cons.op == prod.op and not (wv & (regs_of(cons.ops[1]) | regs_of(cons.ops[2])))
            if not same_c:
                n = max(n, 3)
        if cons.cls == 'vmem' and ws & cons.rd:
            n = max(n, 5)
        if cons.cls in ('salu', 'smem') and ws & cons.rd:
            n = max(n, 1)
        if regs_of('exec') & ws:
            n = max(n, 5)
    elif prod.cls == 'mfma':
        p = prod.passes
        big = {4: 8, 8: 12}[p]
        if cons.cls == 'mfma':
            if prod.wr & cons.srcab:
                n = max(n, big)
            if prod.wr & cons.srcc and not (prod.wr == cons.srcc and cons.passes == p):
                n = max(n, big - 2)
            if prod.wr & cons.wr and prod.wr != cons.srcc:
                n = max(n, big)
        elif prod.wr & touch:
            n = max(n, big)
        if cons.cls == 'valu' and prod.srcc & cons.wr:
            n = max(n, {4: 3, 8: 7}[p])
    elif prod.cls == 'vmem':
        if prod.store_data & cons.wr:
            n = max(n, 2)
    elif prod.cls == 'salu':
        if regs_of('m0') & prod.wr and getattr(cons, 'lds_dma', False):
            n = max(n, 1)
    return n


class State:
    def __init__(self):
        self.hist = []
        self.vm = []
        self.lgkm = []

    def key(self):
        return ([sorted(x) for x in self.vm], [(k, sorted(x)) for k, x in self.lgkm])


class Asm:
    def __init__(self):
        self.out = []
        self.st = State()
        self.snap = {}
        self.dead = False
        self.maxv = -1
        self.maxs = -1
        self.nops = 0

    def raw(self, text):
        self.out.append(text)

    def c(self, text):
        self.out.append('    ; ' + text)

    def begin_kernel(self, name):
        self.st = State()
        self.snap = {}
        self.dead = False
        self.maxv = 0
        self.maxs = 2
        self.raw('.globl %s' % name)
        self.raw('.p2align 8')
        self.raw('.type %s,@function' % name)
        self.raw('%s:' % name)

    def _push(self, ins):
        self.out.append('    ' + ins.text)
        h = self.st.hist
        h.append(ins)
        if len(h) > 24:
            del h[0]

    def _wait(self, vm=None, lg=None):
        parts = []
        st = self.st
        if vm is not None:
            vm = min(vm, 63)
            parts.append('vmcnt(%d)' % vm)
            del st.vm[:max(0, len(st.vm) - vm)]
        if lg is not None:
            lg = min(lg, 15)
            parts.append('lgkmcnt(%d)' % lg)
            del st.lgkm[:max(0, len(st.lgkm) - lg)]
        self._push(Ins('s_waitcnt ' + ' '.join(parts)))

    def wait(self, vm=None, lg=None):
        if lg is not None and lg > 0:
            assert all(k == 'ds' for k, _ in self.st.lgkm), 'counted lgkmcnt with SMEM outstanding'
        self._wait(vm, lg)

    def full_wait(self):
        self._wait(0, 0)

    def pad_all(self):
        rem = 0
        dist = 0
        for p in reversed(self.st.hist):
            w = 0
            if p.cls == 'mfma':
                w = {4: 8, 8: 12}[p.passes]
            elif p.cls == 'valu':
                w = 5 if S(p.wr) else 3
            elif p.cls == 'vmem' and p.store_data:
                w = 2
            elif p.cls == 'salu' and regs_of('m0') & p.wr:
                w = 1
            rem = max(rem, w - dist)
            dist += p.states
        if rem > 0:
            self._push(Ins('s_nop %d' % (rem - 1)))

    def I(self, text):
        assert not self.dead, 'emitting into dead code: ' + text
        ins = Ins(text)
        st = self.st
        for k, i in ins.rd | ins.wr:
            if k == 'v':
                self.maxv = max(self.maxv, i)
            if k == 's' and i < 102:
                self.maxs = max(self.maxs, i)
        touch = ins.rd | ins.wr
        vm = lg = None
        for idx in range(len(st.vm) - 1, -1, -1):
            if st.vm[idx] & touch:
                vm = len(st.vm) - 1 - idx
                break
        for idx in range(len(st.lgkm) - 1, -1, -1):
            if st.lgkm[idx][1] & touch:
                lg = len(st.lgkm) - 1 - idx
                if any(k != 'ds' for k, _ in st.lgkm):
                    lg = 0
                break
        if vm is not None or lg is not None:
            self._wait(vm, lg)
        is_branch = ins.op.startswith(('s_cbranch', 's_branch'))
        if is_branch:
            self.pad_all()
        rem = 0
        dist = 0
        for p in reversed(st.hist):
            rem = max(rem, need(p, ins) - dist)
            dist += p.states
            if dist > 20:
                break
        if rem > 0:
            self.nops += rem
            self._push(Ins('s_nop %d' % (rem - 1)))
        self._push(ins)
        if ins.cls == 'vmem':
            st.vm.append(set(ins.wr))
            assert len(st.vm) <= 63, 'too many VMEM ops outstanding'
        elif ins.cls == 'ds':
            st.lgkm.append(('ds', set(ins.wr)))
        elif ins.cls == 'smem':
            st.lgkm.append(('smem', set(ins.wr)))
        if is_branch:
            tgt = ins.ops[0]
            self.snap.setdefault(tgt, []).append(copy.deepcopy(st.key()))
            self.snap.setdefault(tgt + '#st', []).append(copy.deepcopy((st.vm, st.lgkm)))
            if ins.op == 's_branch':
                self.dead = True
        if ins.op == 's_endpgm':
            self.dead = True

    def label(self, name, end_only=False):
        keys = list(self.snap.get(name, []))
        sts = self.snap.get(name + '#st', [])
        if not self.dead:
            self.pad_all()
            keys.append(self.st.key())
        if not end_only:
            assert all(k == keys[0] for k in keys), 'pending-load state differs at label ' + name
        if self.dead:
            self.st = State()
            if sts:
                self.st.vm, self.st.lgkm = copy.deepcopy(sts[0])
        self.st.hist = []
        self.dead = False
        self.raw('%s:' % name)

    def srd(self, d, base, nbytes):
        self.I('s_mov_b32 %s, %s' % (sr(d), sr(base)))
        self.I('s_mov_b32 %s, %s' % (sr(d + 1), sr(base + 1)))
        self.I('s_mov_b32 %s, 0x%x' % (sr(d + 2), nbytes))
        self.I('s_mov_b32 %s, 0x20000' % sr(d + 3))

    def srd_off(self, d, base, off, nbytes):
        self.I('s_add_u32 %s, %s, 0x%x' % (sr(d), sr(base), off))
        self.I('s_addc_u32 %s, %s, 0' % (sr(d + 1), sr(base + 1)))
        self.I('s_mov_b32 %s, 0x%x' % (sr(d + 2), nbytes))
        self.I('s_mov_b32 %s, 0x20000' % sr(d + 3))

    def desc(self, name):
        nv = self.maxv + 1
        acc = max(4, (nv + 3) // 4 * 4)
        return '\n'.join([
            '.p2align 6',
            '.amdhsa_kernel %s' % name,
            '  .amdhsa_next_free_vgpr %d' % nv,
            '  .amdhsa_next_free_sgpr %d' % (self.maxs + 1),
            '  .amdhsa_accum_offset %d' % acc,
            '  .amdhsa_group_segment_fixed_size 0',
            '  .amdhsa_kernarg_size 120',
            '  .amdhsa_user_sgpr_count 2',
            '  .amdhsa_user_sgpr_kernarg_segment_ptr 1',
            '  .amdhsa_system_sgpr_workgroup_id_x 1',
            '.end_amdhsa_kernel'])


class Alloc:
    def __init__(self, start, limit):
        self.n = start
        self.limit = limit

    def __call__(self, n=1, align=None):
        if align is None:
            align = 1 if n == 1 else (2 if n < 4 else 4)
        self.n = (self.n + align - 1) // align * align
        b = self.n
        self.n += n
        assert self.n <= self.limit, 'out of registers'
        return b
```

```python
import sys
import math
from asmlib import *

NAME = 'adaLN_cond__spectral_fnet__moe_arch_mod__prompt'

WS_A = 0x000000
WS_H2 = 0x200000
WS_MOD = 0x400000
WS_KEY = 0x404000
WS_SEL = 0x406000
WS_PART = 0x408000
WS_END = 0x440000

DPP_ALL = 'row_mask:0xf bank_mask:0xf'
LOG2E = 1.4426950408889634


def lane_ids(a, va, need_w=True):
    vi, vq, vw = va(), va(), va()
    a.I(f'v_and_b32 {vr(vi)}, 15, v0')
    a.I(f'v_bfe_u32 {vr(vq)}, v0, 4, 2')
    a.I(f'v_lshrrev_b32 {vr(vw)}, 6, v0')
    return vi, vq, vw


def round_bf16_pair(a, x0, x1, tmp):
    a.I(f'v_cvt_pk_bf16_f32 {vr(tmp)}, {vr(x0)}, {vr(x1)}')
    a.I(f'v_lshlrev_b32 {vr(x0)}, 16, {vr(tmp)}')
    a.I(f'v_and_b32 {vr(x1)}, 0xffff0000, {vr(tmp)}')


def k1(a):
    name = 'k1_kernel'
    a.begin_kernel(name)
    PITCH = 288
    a.I('s_cmp_ge_u32 s2, 224')
    a.I('s_cbranch_scc1 K1_END')
    a.I('s_load_dwordx2 s[4:5], s[0:1], 0')
    a.I('s_load_dwordx2 s[6:7], s[0:1], 112')
    a.I('s_load_dwordx4 s[8:11], s[0:1], 80')
    a.I('s_cmp_ge_u32 s2, 128')
    a.I('s_cbranch_scc1 K1_MOD')
    va = Alloc(1, 256)
    vi, vq, vw = lane_ids(a, va)
    voff0, voff1 = va(), va()
    t0, t1 = va(), va()
    a.I(f'v_lshl_add_u32 {vr(t0)}, {vr(vw)}, 3, {vr(vq)}')
    a.I(f'v_lshlrev_b32 {vr(voff0)}, 15, {vr(t0)}')
    a.I(f'v_lshl_add_u32 {vr(voff0)}, {vr(vi)}, 4, {vr(voff0)}')
    a.I(f'v_add_u32 {vr(voff1)}, 0x20000, {vr(voff0)}')
    a.I('s_and_b32 s20, s2, 31')
    a.I('s_lshr_b32 s21, s2, 5')
    a.I('s_lshl_b32 s22, s20, 10')
    for j in range(4):
        a.I(f's_add_u32 s23, s21, {j}')
        a.I('s_and_b32 s23, s23, 3')
        a.I('s_lshl_b32 s23, s23, 8')
        a.I(f's_add_u32 s{24 + j}, s22, s23')
    a.srd(12, 4, 2048 * 1024)
    X = [[va(4) for j in range(4)] for h in range(2)]
    for j in range(4):
        for h in range(2):
            a.I(f'buffer_load_dwordx4 {vr(X[h][j], 4)}, {vr((voff0, voff1)[h])}, s[12:15], s{24 + j} offen')
    a.srd_off(16, 6, WS_A, 0x200000)
    vlw, vlr, vst = va(), va(), va()
    a.I(f'v_mul_u32_u24 {vr(vlw)}, {PITCH}, {vr(t0)}')
    a.I(f'v_lshl_add_u32 {vr(vlw)}, {vr(vi)}, 4, {vr(vlw)}')
    vmt, vcb = va(), va()
    a.I(f'v_and_b32 {vr(vmt)}, 3, {vr(vw)}')
    a.I(f'v_lshrrev_b32 {vr(vcb)}, 2, {vr(vw)}')
    a.I(f'v_lshrrev_b32 {vr(t0)}, 2, {vr(vi)}')
    a.I(f'v_lshl_add_u32 {vr(t0)}, {vr(vq)}, 2, {vr(t0)}')
    a.I(f'v_mul_u32_u24 {vr(vlr)}, {PITCH}, {vr(t0)}')
    a.I(f'v_lshl_add_u32 {vr(vlr)}, {vr(vcb)}, 7, {vr(vlr)}')
    a.I(f'v_and_b32 {vr(t0)}, 3, {vr(vi)}')
    a.I(f'v_lshl_add_u32 {vr(vlr)}, {vr(t0)}, 3, {vr(vlr)}')
    a.I(f'v_lshlrev_b32 {vr(vst)}, 19, {vr(vmt)}')
    a.I(f'v_lshl_add_u32 {vr(vst)}, {vr(vq)}, 17, {vr(vst)}')
    a.I(f'v_lshl_add_u32 {vr(vst)}, {vr(vcb)}, 8, {vr(vst)}')
    a.I(f'v_lshl_add_u32 {vr(vst)}, {vr(vi)}, 4, {vr(vst)}')
    a.I('s_lshl_b32 s28, s20, 11')
    a.I('s_lshl_b32 s29, s21, 9')
    a.I('s_add_u32 s28, s28, s29')
    a.I('s_add_u32 s29, s28, 0x10000')
    vrho, vG, vphi, va0 = va(), va(), va(), va()
    a.I(f'v_lshl_add_u32 {vr(vrho)}, {vr(vmt)}, 4, {vr(vi)}')
    a.I(f'v_lshrrev_b32 {vr(vG)}, 1, {vr(vrho)}')
    a.I(f'v_and_b32 {vr(vphi)}, 1, {vr(vrho)}')
    a.I(f'v_cmp_eq_u32 vcc, 1, {vr(vrho)}')
    a.I(f'v_cndmask_b32 {vr(vG)}, {vr(vG)}, 32, vcc' .replace('v_cndmask_b32', 'v_cndmask_b32_e64'))
    a.I(f'v_cndmask_b32_e64 {vr(vphi)}, {vr(vphi)}, 0, vcc')
    a.I(f'v_cvt_f32_u32 {vr(vG)}, {vr(vG)}')
    a.I(f'v_cvt_f32_u32 {vr(vphi)}, {vr(vphi)}')
    a.I(f'v_mul_f32 {vr(vG)}, {lit(1 / 64)}, {vr(vG)}')
    a.I(f'v_mul_f32 {vr(vphi)}, {lit(0.25)}, {vr(vphi)}')
    a.I(f'v_cvt_f32_u32 {vr(t0)}, {vr(vq)}')
    a.I(f'v_mul_f32 {vr(t0)}, 4.0, {vr(t0)}')
    a.I(f'v_fma_f32 {vr(va0)}, {vr(vG)}, {vr(t0)}, {vr(vphi)}')
    AF = [va(4), va(4)]
    tmp = va(8)
    for ks in range(2):
        for j in range(8):
            cst = 32 * ks + 16 * (j // 4) + j % 4
            a.I(f'v_fmamk_f32 {vr(tmp + j)}, {vr(vG)}, {lit(cst)}, {vr(va0)}')
        for j in range(8):
            a.I(f'v_cos_f32 {vr(tmp + j)}, {vr(tmp + j)}')
        for j in range(4):
            a.I(f'v_cvt_pk_bf16_f32 {vr(AF[ks] + j)}, {vr(tmp + 2 * j)}, {vr(tmp + 2 * j + 1)}')
    sm = [va(), va()]
    sq = [va(), va()]
    a.I('s_mov_b32 s30, 0x3f803f80')
    for j in range(4):
        for d in range(4):
            for h in range(2):
                x = vr(X[h][j] + d)
                first = j == 0 and d == 0
                a.I(f'v_dot2_f32_bf16 {vr(sm[h])}, {x}, s30, {"0" if first else vr(sm[h])}')
                a.I(f'v_dot2_f32_bf16 {vr(sq[h])}, {x}, {x}, {"0" if first else vr(sq[h])}')
    for ror in (8, 4, 2, 1):
        for r in (sm[0], sq[0], sm[1], sq[1]):
            a.I(f'v_add_f32_dpp {vr(r)}, {vr(r)}, {vr(r)} row_ror:{ror} {DPP_ALL}')
    for h in range(2):
        a.I(f'v_mul_f32 {vr(sm[h])}, {lit(1 / 512)}, {vr(sm[h])}')
        a.I(f'v_mul_f32 {vr(sq[h])}, {lit(1 / 512)}, {vr(sq[h])}')
    for h in range(2):
        a.I(f'v_fma_f32 {vr(sq[h])}, -{vr(sm[h])}, {vr(sm[h])}, {vr(sq[h])}')
    for h in range(2):
        a.I(f'v_max_f32 {vr(sq[h])}, 0, {vr(sq[h])}')
    round_bf16_pair(a, sq[0], sq[1], t0)
    round_bf16_pair(a, sm[0], sm[1], t1)
    for h in range(2):
        a.I(f'v_add_f32 {vr(sq[h])}, {lit(1e-5)}, {vr(sq[h])}')
    round_bf16_pair(a, sq[0], sq[1], t0)
    for h in range(2):
        a.I(f'v_sqrt_f32 {vr(sq[h])}, {vr(sq[h])}')
    round_bf16_pair(a, sq[0], sq[1], t0)
    for h in range(2):
        a.I(f'v_rcp_f32 {vr(sq[h])}, {vr(sq[h])}')
    N = [va(4), va(4)]
    for h in range(2):
        for d in range(4):
            x = X[h][0] + d
            p = tmp + 2 * d
            a.I(f'v_lshlrev_b32 {vr(p)}, 16, {vr(x)}')
            a.I(f'v_and_b32 {vr(p + 1)}, 0xffff0000, {vr(x)}')
        for d in range(8):
            a.I(f'v_sub_f32 {vr(tmp + d)}, {vr(tmp + d)}, {vr(sm[h])}')
        for d in range(4):
            round_bf16_pair(a, tmp + 2 * d, tmp + 2 * d + 1, N[h] + d)
        for d in range(8):
            a.I(f'v_mul_f32 {vr(tmp + d)}, {vr(tmp + d)}, {vr(sq[h])}')
        for d in range(4):
            a.I(f'v_cvt_pk_bf16_f32 {vr(N[h] + d)}, {vr(tmp + 2 * d)}, {vr(tmp + 2 * d + 1)}')
        a.I(f'ds_write_b128 {vr(vlw)}, {vr(N[h], 4)} offset:{4 * h * PITCH}')
    a.wait(lg=0)
    a.I('s_barrier')
    B = [[va(4) for ks in range(2)] for c in range(4)]
    for ks in range(2):
        for c in range(4):
            for half in range(2):
                off = (32 * ks + 16 * half) * PITCH + 32 * c
                a.I(f'ds_read_b64_tr_b16 {vr(B[c][ks] + 2 * half, 2)}, {vr(vlr)} offset:{off}')
    D = [va(4) for c in range(4)]
    for ks in range(2):
        for c in range(4):
            a.I(f'v_mfma_f32_16x16x32_bf16 {vr(D[c], 4)}, {vr(AF[ks], 4)}, {vr(B[c][ks], 4)}, {"0" if ks == 0 else vr(D[c], 4)}')
    O = [va(4), va(4)]
    for c in range(4):
        for gg in range(2):
            a.I(f'v_cvt_pk_bf16_f32 {vr(O[gg] + c)}, {vr(D[c] + 2 * gg)}, {vr(D[c] + 2 * gg + 1)}')
    for gg in range(2):
        a.I(f'buffer_store_dwordx4 {vr(O[gg], 4)}, {vr(vst)}, s[16:19], s{28 + gg} offen')
    a.I('s_endpgm')

    a.label('K1_MOD')
    va = Alloc(1, 256)
    a.I('s_sub_u32 s20, s2, 128')
    a.I('s_and_b32 s21, s20, 7')
    a.I('s_lshr_b32 s22, s20, 4')
    a.I('s_lshl_b32 s22, s22, 3')
    a.I('s_add_u32 s21, s21, s22')
    a.I('s_lshl_b32 s21, s21, 1')
    a.I('s_bfe_u32 s22, s20, 0x10003')
    a.I('s_add_u32 s21, s21, s22')
    a.I('s_lshl_b32 s24, s21, 6')
    for jj in range(1, 4):
        a.I(f's_add_u32 s{24 + jj}, s24, {jj * 128 * 6144}')
    vrow, vc4, voff, vco = va(), va(), va(), va()
    a.I(f'v_lshrrev_b32 {vr(vrow)}, 2, v0')
    a.I(f'v_and_b32 {vr(vc4)}, 3, v0')
    a.I(f'v_mul_u32_u24 {vr(voff)}, 6144, {vr(vrow)}')
    a.I(f'v_lshl_add_u32 {vr(voff)}, {vr(vc4)}, 4, {vr(voff)}')
    a.I(f'v_lshlrev_b32 {vr(vco)}, 1, {vr(vrow)}')
    a.srd(12, 8, 1024)
    a.srd(16, 10, 512 * 6144)
    cv = va(4)
    for jj in range(4):
        a.I(f'buffer_load_ushort {vr(cv + jj)}, {vr(vco)}, s[12:15], 0 offen offset:{256 * jj}')
    W = [va(4) for jj in range(4)]
    for jj in range(4):
        a.I(f'buffer_load_dwordx4 {vr(W[jj], 4)}, {vr(voff)}, s[16:19], s{24 + jj} offen')
    a.srd_off(28, 6, WS_MOD, 6 * 2048)
    e = va(4)
    for jj in range(4):
        a.I(f'v_lshlrev_b32 {vr(cv + jj)}, 16, {vr(cv + jj)}')
    for jj in range(4):
        a.I(f'v_mul_f32 {vr(e + jj)}, {lit(-LOG2E)}, {vr(cv + jj)}')
    for jj in range(4):
        a.I(f'v_exp_f32 {vr(e + jj)}, {vr(e + jj)}')
    for jj in range(4):
        a.I(f'v_add_f32 {vr(e + jj)}, 1.0, {vr(e + jj)}')
    for jj in range(4):
        a.I(f'v_rcp_f32 {vr(e + jj)}, {vr(e + jj)}')
    for jj in range(4):
        a.I(f'v_mul_f32 {vr(cv + jj)}, {vr(cv + jj)}, {vr(e + jj)}')
    round_bf16_pair(a, cv, cv + 1, e)
    round_bf16_pair(a, cv + 2, cv + 3, e + 1)
    acc = va(8)
    tmp = va(8)
    for jj in range(4):
        for d in range(4):
            a.I(f'v_lshlrev_b32 {vr(tmp + 2 * d)}, 16, {vr(W[jj] + d)}')
            a.I(f'v_and_b32 {vr(tmp + 2 * d + 1)}, 0xffff0000, {vr(W[jj] + d)}')
        for d in range(8):
            if jj == 0:
                a.I(f'v_mul_f32 {vr(acc + d)}, {vr(tmp + d)}, {vr(cv + jj)}')
            else:
                a.I(f'v_fmac_f32 {vr(acc + d)}, {vr(tmp + d)}, {vr(cv + jj)}')
    for ror in (4, 8):
        for d in range(8):
            a.I(f'v_add_f32_dpp {vr(acc + d)}, {vr(acc + d)}, {vr(acc + d)} row_ror:{ror} {DPP_ALL}')
    vl, t0 = va(), va()
    a.I(f'v_lshrrev_b32 {vr(vl)}, 4, v0')
    a.I(f'v_lshlrev_b32 {vr(vl)}, 7, {vr(vl)}')
    a.I(f'v_lshl_add_u32 {vr(vl)}, {vr(vc4)}, 5, {vr(vl)}')
    a.I(f'v_and_b32 {vr(t0)}, 12, v0')
    a.I(f'v_cmp_eq_u32 vcc, 0, {vr(t0)}')
    a.I('s_and_saveexec_b64 s[32:33], vcc')
    a.I(f'ds_write_b128 {vr(vl)}, {vr(acc, 4)}')
    a.I(f'ds_write_b128 {vr(vl)}, {vr(acc + 4, 4)} offset:16')
    a.I('s_mov_b64 exec, s[32:33]')
    a.wait(lg=0)
    a.I('s_barrier')
    a.I(f'v_readfirstlane_b32 s34, v0')
    a.I('s_cmp_ge_u32 s34, 64')
    a.I('s_cbranch_scc1 K1_END')
    vcol = va()
    a.I(f'v_and_b32 {vr(vcol)}, 31, v0')
    a.I(f'v_lshrrev_b32 {vr(t0)}, 5, v0')
    a.I(f'v_lshlrev_b32 {vr(vl)}, 11, {vr(t0)}')
    a.I(f'v_lshl_add_u32 {vr(vl)}, {vr(vcol)}, 2, {vr(vl)}')
    P = va(16)
    for p in range(8):
        a.I(f'ds_read2_b32 {vr(P + 2 * p, 2)}, {vr(vl)} offset0:{64 * p % 256} offset1:{(64 * p + 32) % 256}'
            if p < 4 else
            f'ds_read2_b32 {vr(P + 2 * p, 2)}, {vr(t0)} offset0:{64 * (p - 4)} offset1:{64 * (p - 4) + 32}')
        if p == 0:
            a.I(f'v_add_u32 {vr(t0)}, 1024, {vr(vl)}')
    for step in (8, 4, 2, 1):
        for p in range(step):
            a.I(f'v_add_f32 {vr(P + p)}, {vr(P + p)}, {vr(P + p + step)}')
    a.I(f'v_mov_b32 {vr(P + 1)}, {vr(P)}')
    a.I(f'v_permlane32_swap_b32 {vr(P)}, {vr(P + 1)}')
    a.I(f'v_add_f32 {vr(P)}, {vr(P)}, {vr(P + 1)}')
    round_bf16_pair(a, P, P + 1, P + 2)
    a.I('s_lshr_b32 s22, s21, 4')
    a.I(f'v_add_f32 {vr(P + 4)}, 1.0, {vr(P)}')
    round_bf16_pair(a, P + 4, P + 1, P + 2)
    a.I(f'v_mul_f32 {vr(P + 5)}, {lit(2048.0)}, {vr(P)}')
    a.I('s_cmp_eq_u32 s22, 1')
    a.I('s_cselect_b64 s[36:37], -1, 0')
    a.I('s_cmp_eq_u32 s22, 4')
    a.I('s_cselect_b64 s[36:37], -1, s[36:37]')
    a.I('s_cmp_eq_u32 s22, 0')
    a.I('s_cselect_b64 s[38:39], -1, 0')
    a.I('s_cmp_lt_u32 s22, 2')
    a.I('s_cselect_b64 s[40:41], -1, 0')
    a.I(f'v_cndmask_b32_e64 {vr(P)}, {vr(P)}, {vr(P + 4)}, s[36:37]')
    a.I(f'v_cndmask_b32_e64 {vr(P)}, {vr(P)}, {vr(P + 5)}, s[38:39]')
    a.I('s_lshl_b32 s23, s21, 5')
    vj, vp = P + 6, P + 7
    a.I(f'v_add_u32 {vr(vj)}, s23, {vr(vcol)}')
    a.I(f'v_and_b32 {vr(vp)}, 0xffffffc0, {vr(vj)}')
    a.I(f'v_and_b32 {vr(t0)}, 15, {vr(vj)}')
    a.I(f'v_lshl_add_u32 {vr(vp)}, {vr(t0)}, 2, {vr(vp)}')
    a.I(f'v_bfe_u32 {vr(t0)}, {vr(vj)}, 4, 2')
    a.I(f'v_add_u32 {vr(vp)}, {vr(vp)}, {vr(t0)}')
    a.I(f'v_cndmask_b32_e64 {vr(vj)}, {vr(vj)}, {vr(vp)}, s[40:41]')
    a.I(f'v_lshlrev_b32 {vr(vj)}, 2, {vr(vj)}')
    a.I(f'buffer_store_dword {vr(P)}, {vr(vj)}, s[28:31], 0 offen')
    a.label('K1_END', end_only=True)
    a.I('s_endpgm')
    return name, (224, 512, 64 * PITCH), a.desc(name)


def wave_sum(a, regs):
    for m in ('quad_perm:[1,0,3,2]', 'quad_perm:[2,3,0,1]', 'row_half_mirror', 'row_mirror'):
        for r in regs:
            a.I(f'v_add_f32_dpp {vr(r)}, {vr(r)}, {vr(r)} {m} {DPP_ALL}')
    for r in regs:
        a.I(f'v_add_f32_dpp {vr(r)}, {vr(r)}, {vr(r)} row_bcast:15 row_mask:0xa bank_mask:0xf')
    for r in regs:
        a.I(f'v_add_f32_dpp {vr(r)}, {vr(r)}, {vr(r)} row_bcast:31 row_mask:0xc bank_mask:0xf')


def k2(a):
    name = 'k2_kernel'
    a.begin_kernel(name)
    a.I('s_cmp_ge_u32 s2, 256')
    a.I('s_cbranch_scc1 K2_END')
    a.I('s_load_dwordx2 s[4:5], s[0:1], 0')
    a.I('s_load_dwordx2 s[6:7], s[0:1], 112')
    a.I('s_load_dwordx2 s[8:9], s[0:1], 48')
    a.I('s_load_dwordx2 s[10:11], s[0:1], 96')
    va = Alloc(1, 256)
    vi, vq, vw = lane_ids(a, va)
    voff = va()
    a.I(f'v_lshlrev_b32 {vr(voff)}, 13, {vr(vq)}')
    a.I(f'v_lshl_add_u32 {vr(voff)}, {vr(vw)}, 8, {vr(voff)}')
    a.I(f'v_lshl_add_u32 {vr(voff)}, {vr(vi)}, 4, {vr(voff)}')
    a.I('s_and_b32 s40, s2, 31')
    a.I('s_lshr_b32 s41, s2, 5')
    a.I('s_lshl_b32 s42, s40, 16')
    a.I('s_add_u32 s43, s42, 4096')
    a.I('s_add_u32 s44, s42, 0x8000')
    a.I('s_add_u32 s45, s42, 0x9000')
    a.srd(12, 6, WS_END)
    L = [va(16), va(16)]
    for ks in range(2):
        for mm in range(4):
            a.I(f'buffer_load_dwordx4 {vr(L[ks] + 4 * mm, 4)}, {vr(voff)}, s[12:15], s{42 + 2 * ks + mm // 2} offen offset:{2048 * (mm % 2)}')
    vmo = va()
    a.I(f'v_lshlrev_b32 {vr(vmo)}, 8, {vr(vw)}')
    a.I(f'v_lshl_add_u32 {vr(vmo)}, {vr(vi)}, 4, {vr(vmo)}')
    a.I(f's_mov_b32 s46, 0x{WS_MOD:x}')
    CA, SA = va(4), va(4)
    a.I(f'buffer_load_dwordx4 {vr(CA, 4)}, {vr(vmo)}, s[12:15], s46 offen offset:2048')
    a.I(f'buffer_load_dwordx4 {vr(SA, 4)}, {vr(vmo)}, s[12:15], s46 offen')
    a.I('s_sub_u32 s47, 64, s40')
    a.I('s_cmp_eq_u32 s40, 0')
    a.I('s_cselect_b32 s47, 32, s47')
    a.I('s_cmp_ge_u32 s41, 4')
    a.I('s_cselect_b32 s47, s47, s40')
    a.I('s_and_b32 s48, s41, 3')
    a.I('s_lshl_b32 s48, s48, 9')
    a.I('s_add_u32 s47, s47, s48')
    a.I(f'v_readfirstlane_b32 s49, {vr(vw)}')
    a.I('s_lshl_b32 s49, s49, 6')
    a.I('s_add_u32 s49, s49, s47')
    a.I('s_lshl_b32 s50, s49, 10')
    ve, ve2 = va(), va()
    a.I(f'v_lshlrev_b32 {vr(ve)}, 6, {vr(vi)}')
    a.I(f'v_lshl_add_u32 {vr(ve)}, {vr(vq)}, 4, {vr(ve)}')
    a.I(f'v_lshlrev_b32 {vr(ve2)}, 1, {vr(ve)}')
    a.srd(16, 4, 2048 * 1024)
    a.srd(20, 8, 1024)
    a.srd(24, 10, 2048 * 1024)
    XR, WR = va(4), va(4)
    a.I(f'buffer_load_dwordx4 {vr(XR, 4)}, {vr(ve)}, s[16:19], s50 offen')
    a.I(f'buffer_load_dwordx4 {vr(WR, 4)}, {vr(ve)}, s[20:23], 0 offen')
    a.I(f's_mov_b32 s51, 0x{WS_MOD + 4096:x}')
    a.I(f's_mov_b32 s52, 0x{WS_MOD + 8192:x}')
    GA, SB, CB, GB = va(8), va(8), va(8), va(8)
    for reg, so, io in ((GA, 51, 0), (SB, 51, 2048), (CB, 52, 0), (GB, 52, 2048)):
        for hh in range(2):
            a.I(f'buffer_load_dwordx4 {vr(reg + 4 * hh, 4)}, {vr(ve2)}, s[12:15], s{so} offen offset:{io + 16 * hh}')
    t0, t1 = va(), va()
    vts, vb0, vb1 = va(), va(), va()
    a.I(f'v_lshrrev_b32 {vr(t0)}, 1, {vr(vi)}')
    a.I(f'v_lshl_add_u32 {vr(t0)}, {vr(t0)}, 6, s47')
    a.I(f'v_cvt_f32_u32 {vr(vts)}, {vr(t0)}')
    a.I(f'v_mul_f32 {vr(vts)}, {lit(1 / 2048)}, {vr(vts)}')
    a.I(f'v_and_b32 {vr(t0)}, 1, {vr(vi)}')
    a.I(f'v_cvt_f32_u32 {vr(t0)}, {vr(t0)}')
    a.I(f'v_mul_f32 {vr(t0)}, {lit(0.25)}, {vr(t0)}')
    vqf = va()
    a.I(f'v_cvt_f32_u32 {vr(vqf)}, {vr(vq)}')
    a.I(f'v_mul_f32 {vr(t1)}, 4.0, {vr(vqf)}')
    a.I(f'v_fma_f32 {vr(vb0)}, {vr(vts)}, {vr(t1)}, {vr(t0)}')
    a.I('s_cmp_ge_u32 s41, 4')
    a.I(f's_cselect_b32 s53, {lit(0.25)}, 0')
    a.I(f's_cselect_b32 s54, 0, {lit(-0.25)}')
    a.I('s_or_b32 s53, s53, s54')
    a.I('s_cmp_ge_u32 s41, 4')
    a.I('s_mov_b32 s55, 0xffff')
    a.I('s_cselect_b32 s54, 0xffff0000, s55')
    a.I('s_cmp_eq_u32 s40, 0')
    a.I('s_cselect_b32 s53, 0, s53')
    a.I('s_cselect_b32 s54, s54, -1')
    a.I(f'v_add_f32 {vr(vb1)}, s53, {vr(vb0)}')
    AF = [va(4), va(4)]
    tmp = va(8)
    for ks in range(2):
        for j in range(8):
            a.I(f'v_fmamk_f32 {vr(tmp + j)}, {vr(vts)}, {lit(16 * ks + j // 2)}, {vr((vb0, vb1)[j % 2])}')
        for j in range(8):
            a.I(f'v_cos_f32 {vr(tmp + j)}, {vr(tmp + j)}')
        for j in range(4):
            a.I(f'v_cvt_pk_bf16_f32 {vr(AF[ks] + j)}, {vr(tmp + 2 * j)}, {vr(tmp + 2 * j + 1)}')
        for j in range(4):
            a.I(f'v_and_b32 {vr(AF[ks] + j)}, s54, {vr(AF[ks] + j)}')
    E1 = [va(), va()]
    a.I(f'v_lshrrev_b32 {vr(t0)}, 2, {vr(vi)}')
    a.I(f'v_and_b32 {vr(t1)}, 3, {vr(vi)}')
    a.I(f'v_lshl_add_u32 {vr(t0)}, {vr(t0)}, 3, {vr(t1)}')
    a.I(f'v_cvt_f32_u32 {vr(E1[0])}, {vr(t0)}')
    a.I(f'v_add_f32 {vr(E1[1])}, 4.0, {vr(E1[0])}')
    CT, ST, NT = [va(4), va(4)], [va(4), va(4)], [va(4), va(4)]
    tmp2 = va(8)
    a.I('s_mov_b32 s56, 0x80008000')
    for T in range(2):
        a.I(f'v_mul_f32 {vr(t0)}, {lit(1 / 32)}, {vr(E1[T])}')
        a.I(f'v_mul_f32 {vr(t1)}, {lit(8.0)}, {vr(vqf)}')
        a.I(f'v_mul_f32 {vr(t1)}, {vr(t1)}, {vr(t0)}')
        for j in range(8):
            a.I(f'v_fmamk_f32 {vr(tmp + j)}, {vr(t0)}, {lit(j)}, {vr(t1)}')
        for j in range(8):
            a.I(f'v_sin_f32 {vr(tmp2 + j)}, {vr(tmp + j)}')
            a.I(f'v_cos_f32 {vr(tmp + j)}, {vr(tmp + j)}')
        for j in range(4):
            a.I(f'v_cvt_pk_bf16_f32 {vr(CT[T] + j)}, {vr(tmp + 2 * j)}, {vr(tmp + 2 * j + 1)}')
            a.I(f'v_cvt_pk_bf16_f32 {vr(ST[T] + j)}, {vr(tmp2 + 2 * j)}, {vr(tmp2 + 2 * j + 1)}')
        for j in range(4):
            a.I(f'v_xor_b32 {vr(NT[T] + j)}, s56, {vr(ST[T] + j)}')
    WC, WS_ = [va(4), va(4)], [va(4), va(4)]
    for T in range(2):
        a.I(f'v_mul_f32 {vr(t0)}, {lit(1 / 512)}, {vr(E1[T])}')
        a.I(f'v_mul_f32 {vr(t1)}, 4.0, {vr(vqf)}')
        a.I(f'v_mul_f32 {vr(t1)}, {vr(t1)}, {vr(t0)}')
        for r in range(4):
            a.I(f'v_fmamk_f32 {vr(tmp + r)}, {vr(t0)}, {lit(r)}, {vr(t1)}')
        for r in range(4):
            a.I(f'v_cos_f32 {vr(WC[T] + r)}, {vr(tmp + r)}')
            a.I(f'v_sin_f32 {vr(WS_[T] + r)}, {vr(tmp + r)}')
    FC = va(4)
    a.I(f'v_cvt_f32_u32 {vr(t0)}, {vr(vi)}')
    a.I(f'v_mul_f32 {vr(t0)}, {lit(1 / 16)}, {vr(t0)}')
    a.I(f'v_mul_f32 {vr(t1)}, 4.0, {vr(vqf)}')
    a.I(f'v_mul_f32 {vr(t1)}, {vr(t1)}, {vr(t0)}')
    for r in range(4):
        a.I(f'v_fmamk_f32 {vr(tmp + r)}, {vr(t0)}, {lit(r)}, {vr(t1)}')
    for r in range(4):
        a.I(f'v_sin_f32 {vr(tmp + 4 + r)}, {vr(tmp + r)}')
        a.I(f'v_cos_f32 {vr(tmp + r)}, {vr(tmp + r)}')
    for j in range(4):
        a.I(f'v_cvt_pk_bf16_f32 {vr(FC + j)}, {vr(tmp + 2 * j)}, {vr(tmp + 2 * j + 1)}')
    vlw, vlr = va(), va()
    a.I(f'v_lshlrev_b32 {vr(vlw)}, 12, {vr(vq)}')
    a.I(f'v_lshrrev_b32 {vr(t0)}, 1, {vr(vw)}')
    a.I(f'v_lshl_add_u32 {vr(vlw)}, {vr(t0)}, 8, {vr(vlw)}')
    a.I(f'v_lshl_add_u32 {vr(vlw)}, {vr(vi)}, 4, {vr(vlw)}')
    a.I(f'v_and_b32 {vr(t0)}, 1, {vr(vw)}')
    a.I(f'v_lshl_add_u32 {vr(vlw)}, {vr(t0)}, 3, {vr(vlw)}')
    a.I(f'v_and_b32 {vr(t0)}, 63, v0')
    a.I(f'v_lshlrev_b32 {vr(vlr)}, 11, {vr(vw)}')
    a.I(f'v_lshl_add_u32 {vr(vlr)}, {vr(t0)}, 4, {vr(vlr)}')
    a.I(f'v_cmp_eq_u32 vcc, 0, {vr(vq)}')
    a.I('s_cmp_eq_u32 s2, 0')
    a.I('s_cselect_b64 s[58:59], vcc, 0')
    D = [va(4) for c in range(4)]
    for ks in range(2):
        for x in range(4):
            for y in range(x + 1, 4):
                a.I(f'v_swap_b32 {vr(L[ks] + 4 * x + y)}, {vr(L[ks] + 4 * y + x)}')
        for c in range(4):
            a.I(f'v_mfma_f32_16x16x32_bf16 {vr(D[c], 4)}, {vr(AF[ks], 4)}, {vr(L[ks] + 4 * c, 4)}, {"0" if ks == 0 else vr(D[c], 4)}')
    for c in range(4):
        a.I(f'v_cndmask_b32_e64 {vr(SA + c)}, 0, {vr(SA + c)}, s[58:59]')
    for c in range(4):
        a.I(f'v_fma_f32 {vr(D[c])}, {vr(D[c])}, {vr(CA + c)}, {vr(SA + c)}')
        for r in range(1, 4):
            a.I(f'v_mul_f32 {vr(D[c] + r)}, {vr(D[c] + r)}, {vr(CA + c)}')
    for r in range(4):
        a.I(f'v_cvt_pk_bf16_f32 {vr(tmp + 2 * r)}, {vr(D[0] + r)}, {vr(D[1] + r)}')
        a.I(f'v_cvt_pk_bf16_f32 {vr(tmp + 2 * r + 1)}, {vr(D[2] + r)}, {vr(D[3] + r)}')
        a.I(f'ds_write_b64 {vr(vlw)}, {vr(tmp + 2 * r, 2)} offset:{1024 * r}')
    a.wait(lg=0)
    a.I('s_barrier')
    vb = Alloc(L[0], L[0] + 32)
    PR, PI = vb(4), vb(4)
    a.I(f'ds_read_b128 {vr(PR, 4)}, {vr(vlr)}')
    a.I(f'ds_read_b128 {vr(PI, 4)}, {vr(vlr)} offset:1024')
    QR, QI = [vb(4), vb(4)], [vb(4), vb(4)]
    for T in range(2):
        a.I(f'v_mfma_f32_16x16x32_bf16 {vr(QR[T], 4)}, {vr(PR, 4)}, {vr(CT[T], 4)}, 0')
        a.I(f'v_mfma_f32_16x16x32_bf16 {vr(QI[T], 4)}, {vr(PR, 4)}, {vr(NT[T], 4)}, 0')
    for T in range(2):
        a.I(f'v_mfma_f32_16x16x32_bf16 {vr(QR[T], 4)}, {vr(PI, 4)}, {vr(ST[T], 4)}, {vr(QR[T], 4)}')
        a.I(f'v_mfma_f32_16x16x32_bf16 {vr(QI[T], 4)}, {vr(PI, 4)}, {vr(CT[T], 4)}, {vr(QI[T], 4)}')
    XF, WF = D[0], D[2]
    for d in range(4):
        a.I(f'v_lshlrev_b32 {vr(XF + 2 * d)}, 16, {vr(XR + d)}')
        a.I(f'v_and_b32 {vr(XF + 2 * d + 1)}, 0xffff0000, {vr(XR + d)}')
    Y = va(8)
    QA = [vb(4), vb(4)]
    for T in range(2):
        tt = (tmp, tmp2)[T]
        for r in range(4):
            a.I(f'v_mul_f32 {vr(tt + r)}, {vr(QR[T] + r)}, {vr(WC[T] + r)}')
            a.I(f'v_mul_f32 {vr(tt + 4 + r)}, {vr(QI[T] + r)}, {vr(WC[T] + r)}')
        for r in range(4):
            a.I(f'v_fmac_f32 {vr(tt + r)}, {vr(QI[T] + r)}, {vr(WS_[T] + r)}')
            a.I(f'v_fma_f32 {vr(tt + 4 + r)}, -{vr(QR[T] + r)}, {vr(WS_[T] + r)}, {vr(tt + 4 + r)}')
        for j in range(4):
            a.I(f'v_cvt_pk_bf16_f32 {vr(QA[T] + j)}, {vr(tt + 2 * j)}, {vr(tt + 2 * j + 1)}')
        a.I(f'v_mfma_f32_16x16x32_bf16 {vr(Y + 4 * T, 4)}, {vr(QA[T], 4)}, {vr(FC, 4)}, 0')
    for d in range(4):
        a.I(f'v_lshlrev_b32 {vr(WF + 2 * d)}, 16, {vr(WR + d)}')
        a.I(f'v_and_b32 {vr(WF + 2 * d + 1)}, 0xffff0000, {vr(WR + d)}')
    s_cw, s_sw, s_x, s_xx, s_xw = va(), va(), va(), va(), va()
    for d in range(8):
        if d == 0:
            a.I(f'v_mul_f32 {vr(s_sw)}, {vr(SB)}, {vr(WF)}')
        else:
            a.I(f'v_fmac_f32 {vr(s_sw)}, {vr(SB + d)}, {vr(WF + d)}')
        a.I(f'v_mul_f32 {vr(WF + d)}, {vr(CB + d)}, {vr(WF + d)}')
    a.I(f'v_add_f32 {vr(s_cw)}, {vr(WF)}, {vr(WF + 1)}')
    for d in range(2, 8):
        a.I(f'v_add_f32 {vr(s_cw)}, {vr(s_cw)}, {vr(WF + d)}')
    for d in range(8):
        a.I(f'v_fmac_f32 {vr(XF + d)}, {vr(GA + d)}, {vr(Y + d)}')
    a.I(f'v_add_f32 {vr(s_x)}, {vr(XF)}, {vr(XF + 1)}')
    a.I(f'v_mul_f32 {vr(s_xx)}, {vr(XF)}, {vr(XF)}')
    a.I(f'v_mul_f32 {vr(s_xw)}, {vr(XF)}, {vr(WF)}')
    for d in range(1, 8):
        if d >= 2:
            a.I(f'v_add_f32 {vr(s_x)}, {vr(s_x)}, {vr(XF + d)}')
        a.I(f'v_fmac_f32 {vr(s_xx)}, {vr(XF + d)}, {vr(XF + d)}')
        a.I(f'v_fmac_f32 {vr(s_xw)}, {vr(XF + d)}, {vr(WF + d)}')
    wave_sum(a, [s_x, s_xx, s_xw, s_cw, s_sw])
    a.I(f'v_mul_f32 {vr(s_x)}, {lit(1 / 512)}, {vr(s_x)}')
    a.I(f'v_mul_f32 {vr(s_xx)}, {lit(1 / 512)}, {vr(s_xx)}')
    a.I(f'v_fma_f32 {vr(s_xx)}, -{vr(s_x)}, {vr(s_x)}, {vr(s_xx)}')
    a.I(f'v_max_f32 {vr(s_xx)}, 0, {vr(s_xx)}')
    a.I(f'v_add_f32 {vr(s_xx)}, {lit(1e-5)}, {vr(s_xx)}')
    a.I(f'v_rsq_f32 {vr(s_xx)}, {vr(s_xx)}')
    a.I(f'v_fma_f32 {vr(s_xw)}, -{vr(s_x)}, {vr(s_cw)}, {vr(s_xw)}')
    a.I(f'v_mul_f32 {vr(s_x)}, {vr(s_x)}, {vr(s_xx)}')
    a.I(f'v_fma_f32 {vr(s_xw)}, {vr(s_xw)}, {vr(s_xx)}, {vr(s_sw)}')
    a.I(f'v_readlane_b32 s60, {vr(s_xx)}, 63')
    a.I(f'v_readlane_b32 s61, {vr(s_x)}, 63')
    a.I(f'v_ashrrev_i32 {vr(t0)}, 31, {vr(s_xw)}')
    a.I(f'v_or_b32 {vr(t0)}, 0x80000000, {vr(t0)}')
    a.I(f'v_xor_b32 {vr(t0)}, {vr(t0)}, {vr(s_xw)}')
    a.I(f'v_and_b32 {vr(t0)}, 0xfffff800, {vr(t0)}')
    a.I('s_sub_u32 s62, 2047, s49')
    a.I(f'v_or_b32 {vr(t0)}, s62, {vr(t0)}')
    a.I(f'v_mov_b32 {vr(t1)}, s61')
    H = Y
    for d in range(8):
        a.I(f'v_fma_f32 {vr(H + d)}, {vr(XF + d)}, s60, -{vr(t1)}')
    for d in range(8):
        a.I(f'v_fma_f32 {vr(H + d)}, {vr(H + d)}, {vr(CB + d)}, {vr(SB + d)}')
    for d in range(8):
        a.I(f'v_fmac_f32 {vr(XF + d)}, {vr(GB + d)}, {vr(H + d)}')
    O, HB = va(4), va(4)
    for d in range(4):
        a.I(f'v_cvt_pk_bf16_f32 {vr(O + d)}, {vr(XF + 2 * d)}, {vr(XF + 2 * d + 1)}')
    a.I(f'buffer_store_dwordx4 {vr(O, 4)}, {vr(ve)}, s[24:27], s50 offen')
    for d in range(4):
        a.I(f'v_cvt_pk_bf16_f32 {vr(HB + d)}, {vr(H + 2 * d)}, {vr(H + 2 * d + 1)}')
    a.I(f's_add_u32 s63, s50, 0x{WS_H2:x}')
    a.I(f'buffer_store_dwordx4 {vr(HB, 4)}, {vr(ve)}, s[12:15], s63 offen')
    a.I('s_lshl_b32 s64, s49, 2')
    a.I(f's_add_u32 s64, s64, 0x{WS_KEY:x}')
    a.I('s_mov_b32 exec_lo, 0')
    a.I('s_mov_b32 exec_hi, 0x80000000')
    a.I(f'buffer_store_dword {vr(t0)}, off, s[12:15], s64')
    a.label('K2_END', end_only=True)
    a.I('s_endpgm')
    return name, (256, 512, 16384), a.desc(name)


def top2_merge(a, m1, m2, o1, o2, t):
    a.I(f'v_min_u32 {vr(t)}, {vr(m1)}, {vr(o1)}')
    a.I(f'v_max_u32 {vr(m1)}, {vr(m1)}, {vr(o1)}')
    a.I(f'v_max3_u32 {vr(m2)}, {vr(m2)}, {vr(o2)}, {vr(t)}')


def k3(a):
    name = 'k3_kernel'
    a.begin_kernel(name)
    a.I('s_cmp_ge_u32 s2, 56')
    a.I('s_cbranch_scc1 K3_END')
    a.I('s_load_dwordx4 s[4:7], s[0:1], 56')
    a.I('s_load_dwordx2 s[8:9], s[0:1], 72')
    a.I('s_load_dwordx2 s[10:11], s[0:1], 112')
    va = Alloc(1, 256)
    vi, vq, vw = lane_ids(a, va)
    a.I('s_and_b32 s40, s2, 7')
    a.I('s_lshr_b32 s41, s2, 4')
    a.I('s_lshl_b32 s41, s41, 3')
    a.I('s_add_u32 s40, s40, s41')
    a.I('s_lshl_b32 s40, s40, 1')
    a.I('s_bfe_u32 s41, s2, 0x10003')
    a.I('s_add_u32 s40, s40, s41')
    a.I('s_cmp_ge_u32 s2, 48')
    a.I('s_cselect_b32 s40, s2, s40')
    a.I(f'v_readfirstlane_b32 s42, {vr(vw)}')
    vk = va()
    a.I(f'v_lshlrev_b32 {vr(vk)}, 4, v0')
    a.srd(12, 10, WS_END)
    KY = va(4)
    a.I(f's_mov_b32 s43, 0x{WS_KEY:x}')
    a.I(f'buffer_load_dwordx4 {vr(KY, 4)}, {vr(vk)}, s[12:15], s43 offen')
    a.I('s_cmp_ge_u32 s42, 4')
    a.I('s_cselect_b32 s16, s6, s4')
    a.I('s_cselect_b32 s17, s7, s5')
    a.I(f's_mov_b32 s18, {512 * 3584}')
    a.I('s_mov_b32 s19, 0x20000')
    t0, t1, vrow, voff = va(), va(), va(), va()
    a.I(f'v_and_b32 {vr(t0)}, 3, {vr(vw)}')
    a.I(f'v_lshlrev_b32 {vr(vrow)}, 7, {vr(t0)}')
    a.I(f'v_lshrrev_b32 {vr(t1)}, 2, {vr(vi)}')
    a.I(f'v_lshl_add_u32 {vr(vrow)}, {vr(t1)}, 5, {vr(vrow)}')
    a.I(f'v_lshl_add_u32 {vr(vrow)}, {vr(vq)}, 3, {vr(vrow)}')
    a.I(f'v_mul_u32_u24 {vr(voff)}, 3584, {vr(vrow)}')
    a.I(f'v_and_b32 {vr(t1)}, 3, {vr(vi)}')
    a.I(f'v_lshl_add_u32 {vr(voff)}, {vr(t1)}, 4, {vr(voff)}')
    a.I('s_lshl_b32 s44, s40, 6')
    for jj in range(1, 4):
        a.I(f's_add_u32 s{44 + jj}, s44, {7168 * jj}')
    W = va(32)
    for j in range(8):
        a.I(f'buffer_load_dwordx4 {vr(W + 4 * j, 4)}, {vr(voff)}, s[16:19], s{44 + j // 2} offen offset:{3584 * (j % 2)}')
    a.srd(20, 8, 1792 * 1024)
    vod = va()
    a.I(f'v_lshlrev_b32 {vr(vod)}, 13, {vr(vq)}')
    a.I(f'v_lshl_add_u32 {vr(vod)}, {vr(t0)}, 8, {vr(vod)}')
    a.I(f'v_lshl_add_u32 {vr(vod)}, {vr(vi)}, 4, {vr(vod)}')
    a.I('s_lshl_b32 s48, s40, 15')
    a.I('s_add_u32 s49, s48, 4096')
    WD = va(32)
    for j in range(8):
        a.I(f'buffer_load_dwordx4 {vr(WD + 4 * j, 4)}, {vr(vod)}, s[20:23], s{48 + j // 4} offen offset:{1024 * (j % 4)}')
    m1, m2, o1, o2 = va(2), None, va(2), None
    m2, o2 = m1 + 1, o1 + 1
    a.I(f'v_max_u32 {vr(m1)}, {vr(KY)}, {vr(KY + 1)}')
    a.I(f'v_min_u32 {vr(m2)}, {vr(KY)}, {vr(KY + 1)}')
    a.I(f'v_max_u32 {vr(o1)}, {vr(KY + 2)}, {vr(KY + 3)}')
    a.I(f'v_min_u32 {vr(o2)}, {vr(KY + 2)}, {vr(KY + 3)}')
    top2_merge(a, m1, m2, o1, o2, t1)
    for m in ('quad_perm:[1,0,3,2]', 'quad_perm:[2,3,0,1]', 'row_half_mirror', 'row_mirror'):
        a.I(f'v_mov_b32_dpp {vr(o1)}, {vr(m1)} {m} {DPP_ALL}')
        a.I(f'v_mov_b32_dpp {vr(o2)}, {vr(m2)} {m} {DPP_ALL}')
        top2_merge(a, m1, m2, o1, o2, t1)
    vl = va()
    a.I(f'v_lshrrev_b32 {vr(vl)}, 4, v0')
    a.I(f'v_lshlrev_b32 {vr(vl)}, 3, {vr(vl)}')
    a.I(f'ds_write_b64 {vr(vl)}, {vr(m1, 2)} offset:8192')
    a.wait(lg=0)
    a.I('s_barrier')
    a.I(f'v_lshlrev_b32 {vr(vl)}, 4, {vr(vi)}')
    C4 = va(4)
    a.I(f'ds_read_b128 {vr(C4, 4)}, {vr(vl)} offset:8192')
    a.I(f'v_mov_b32 {vr(m1)}, {vr(C4)}')
    a.I(f'v_mov_b32 {vr(m2)}, {vr(C4 + 1)}')
    top2_merge(a, m1, m2, C4 + 2, C4 + 3, t1)
    for m in ('quad_perm:[1,0,3,2]', 'quad_perm:[2,3,0,1]', 'row_half_mirror', 'row_mirror'):
        a.I(f'v_mov_b32_dpp {vr(o1)}, {vr(m1)} {m} {DPP_ALL}')
        a.I(f'v_mov_b32_dpp {vr(o2)}, {vr(m2)} {m} {DPP_ALL}')
        top2_merge(a, m1, m2, o1, o2, t1)
    a.I(f'v_and_b32 {vr(t1)}, 1, {vr(vi)}')
    a.I(f'v_cmp_eq_u32 vcc, 1, {vr(t1)}')
    a.I(f'v_cndmask_b32 {vr(o1)}, {vr(m1)}, {vr(m2)}, vcc')
    a.I(f'v_and_b32 {vr(o1)}, 0x7ff, {vr(o1)}')
    a.I(f'v_sub_u32 {vr(o1)}, 0x7ff, {vr(o1)}')
    a.I(f'v_lshlrev_b32 {vr(o1)}, 10, {vr(o1)}')
    a.I(f'v_lshl_add_u32 {vr(o1)}, {vr(vrow)}, 1, {vr(o1)}')
    XA = va(4)
    a.I(f's_mov_b32 s50, 0x{WS_H2:x}')
    a.I(f'buffer_load_dwordx4 {vr(XA, 4)}, {vr(o1)}, s[12:15], s50 offen')
    a.I(f's_mov_b32 s51, 0x{WS_SEL:x}')
    a.I(f'buffer_store_dwordx2 {vr(m1, 2)}, off, s[12:15], s51')
    a.I('s_mov_b32 s52, 0x05040100')
    a.I('s_mov_b32 s53, 0x07060302')
    BF = va(32)
    for c in range(8):
        for m in range(4):
            a.I(f'v_perm_b32 {vr(BF + 4 * c + m)}, {vr(W + 4 * (2 * m + 1) + c // 2)}, {vr(W + 4 * (2 * m) + c // 2)}, s{52 + c % 2}')
    BD = W
    for c in range(8):
        for m in range(4):
            a.I(f'v_perm_b32 {vr(BD + 4 * c + m)}, {vr(WD + 4 * (2 * m + 1) + c // 2)}, {vr(WD + 4 * (2 * m) + c // 2)}, s{52 + c % 2}')
    D = WD
    for c in range(8):
        a.I(f'v_mfma_f32_16x16x32_bf16 {vr(D + 4 * c, 4)}, {vr(XA, 4)}, {vr(BF + 4 * c, 4)}, 0')
    a.I(f'v_lshl_add_u32 {vr(vl)}, {vr(t0)}, 2, {vr(vq)}')
    a.I(f'v_lshlrev_b32 {vr(vl)}, 9, {vr(vl)}')
    a.I(f'v_lshrrev_b32 {vr(t1)}, 2, {vr(vw)}')
    a.I(f'v_lshl_add_u32 {vr(vl)}, {vr(t1)}, 8, {vr(vl)}')
    a.I(f'v_and_b32 {vr(t1)}, 3, {vr(vi)}')
    a.I(f'v_lshl_add_u32 {vr(vl)}, {vr(t1)}, 6, {vr(vl)}')
    a.I(f'v_lshrrev_b32 {vr(t1)}, 2, {vr(vi)}')
    a.I(f'v_cmp_eq_u32 vcc, {vr(t1)}, {vr(vq)}')
    a.I('s_and_saveexec_b64 s[54:55], vcc')
    for c in range(8):
        a.I(f'ds_write_b64 {vr(vl)}, {vr(D + 4 * c, 2)} offset:{8 * c}')
    a.I('s_mov_b64 exec, s[54:55]')
    a.wait(lg=0)
    a.I('s_barrier')
    a.I('s_cmp_ge_u32 s42, 4')
    a.I('s_cbranch_scc1 K3_END')
    a.I(f'v_lshlrev_b32 {vr(vl)}, 9, {vr(vq)}')
    a.I(f'v_lshl_add_u32 {vr(vl)}, {vr(vi)}, 4, {vr(vl)}')
    R = BF
    for t in range(4):
        for mat in range(2):
            a.I(f'ds_read_b128 {vr(R + 8 * t + 4 * mat, 4)}, {vr(vl)} offset:{2048 * t + 256 * mat}')
    for d in range(8):
        a.I(f'v_add_f32 {vr(R + d)}, {vr(R + d)}, {vr(R + 8 + d)}')
    for d in range(8):
        a.I(f'v_add_f32 {vr(R + 16 + d)}, {vr(R + 16 + d)}, {vr(R + 24 + d)}')
    for d in range(8):
        a.I(f'v_add_f32 {vr(R + d)}, {vr(R + d)}, {vr(R + 16 + d)}')
    for mat in range(2):
        for cp in range(2):
            b = R + 4 * mat + 2 * cp
            a.I(f'v_permlane32_swap_b32 {vr(b)}, {vr(b + 1)}')
    for mat in range(2):
        for cp in range(2):
            b = R + 4 * mat + 2 * cp
            a.I(f'v_add_f32 {vr(b)}, {vr(b)}, {vr(b + 1)}')
    for mat in range(2):
        b = R + 4 * mat
        a.I(f'v_permlane16_swap_b32 {vr(b)}, {vr(b + 2)}')
    for mat in range(2):
        b = R + 4 * mat
        a.I(f'v_add_f32 {vr(b)}, {vr(b)}, {vr(b + 2)}')
    G, U = R, R + 4
    round_bf16_pair(a, G, U, t1)
    a.I(f'v_mul_f32 {vr(t1)}, {lit(-LOG2E)}, {vr(G)}')
    a.I(f'v_exp_f32 {vr(t1)}, {vr(t1)}')
    a.I(f'v_add_f32 {vr(t1)}, 1.0, {vr(t1)}')
    a.I(f'v_rcp_f32 {vr(t1)}, {vr(t1)}')
    a.I(f'v_mul_f32 {vr(G)}, {vr(G)}, {vr(t1)}')
    a.I(f'v_mul_f32 {vr(G)}, {vr(G)}, {vr(U)}')
    a.I(f'v_cvt_pk_bf16_f32 {vr(G)}, {vr(G)}, {vr(G)}')
    a.I(f'v_lshrrev_b32 {vr(t1)}, 1, {vr(vq)}')
    a.I(f'v_lshlrev_b32 {vr(vl)}, 6, {vr(t1)}')
    a.I(f'v_lshl_add_u32 {vr(vl)}, {vr(vi)}, 2, {vr(vl)}')
    a.I(f'v_and_b32 {vr(t1)}, 1, {vr(vq)}')
    a.I(f'v_lshl_add_u32 {vr(vl)}, {vr(t1)}, 1, {vr(vl)}')
    a.I(f'v_lshl_add_u32 {vr(vl)}, {vr(vw)}, 7, {vr(vl)}')
    a.I(f'ds_write_b16 {vr(vl)}, {vr(G)} offset:8448')
    a.I(f'v_and_b32 {vr(t1)}, 1, {vr(vi)}')
    a.I(f'v_lshlrev_b32 {vr(vl)}, 6, {vr(t1)}')
    a.I(f'v_lshl_add_u32 {vr(vl)}, {vr(vq)}, 4, {vr(vl)}')
    a.I(f'v_lshl_add_u32 {vr(vl)}, {vr(vw)}, 7, {vr(vl)}')
    a.wait(lg=0)
    a.I(f'ds_read_b128 {vr(XA, 4)}, {vr(vl)} offset:8448')
    for c in range(8):
        a.I(f'v_mfma_f32_16x16x32_bf16 {vr(D + 4 * c, 4)}, {vr(XA, 4)}, {vr(BD + 4 * c, 4)}, 0')
    a.I(f'v_cmp_eq_u32 vcc, 1, {vr(vq)}')
    O = R + 8
    for c in range(8):
        a.I(f'v_cndmask_b32 {vr(O + c)}, {vr(D + 4 * c)}, {vr(D + 4 * c + 1)}, vcc')
    a.I(f'v_lshlrev_b32 {vr(vl)}, 11, {vr(vq)}')
    a.I(f'v_lshl_add_u32 {vr(vl)}, {vr(vw)}, 9, {vr(vl)}')
    a.I(f'v_lshl_add_u32 {vr(vl)}, {vr(vi)}, 5, {vr(vl)}')
    a.I('s_lshl_b32 s56, s2, 12')
    a.I(f's_add_u32 s56, s56, 0x{WS_PART:x}')
    a.I('s_mov_b32 exec_hi, 0')
    a.I(f'buffer_store_dwordx4 {vr(O, 4)}, {vr(vl)}, s[12:15], s56 offen')
    a.I(f'buffer_store_dwordx4 {vr(O + 4, 4)}, {vr(vl)}, s[12:15], s56 offen offset:16')
    a.label('K3_END', end_only=True)
    a.I('s_endpgm')
    return name, (56, 512, 9216), a.desc(name)


def k4(a):
    name = 'k4_kernel'
    a.begin_kernel(name)
    a.I('s_cmp_ge_u32 s2, 64')
    a.I('s_cbranch_scc1 K4_END')
    a.I('s_load_dwordx2 s[4:5], s[0:1], 96')
    a.I('s_load_dwordx2 s[6:7], s[0:1], 112')
    va = Alloc(1, 256)
    vc, vp, voff = va(), va(), va()
    a.I(f'v_and_b32 {vr(vc)}, 3, v0')
    a.I(f'v_lshrrev_b32 {vr(vp)}, 2, v0')
    a.I(f'v_lshlrev_b32 {vr(voff)}, 12, {vr(vp)}')
    a.I(f'v_lshl_add_u32 {vr(voff)}, {vr(vc)}, 4, {vr(voff)}')
    a.srd_off(12, 6, WS_PART, 56 * 4096)
    a.srd(16, 6, WS_END)
    a.srd(20, 4, 2048 * 1024)
    a.I('s_lshr_b32 s30, s2, 5')
    a.I('s_lshl_b32 s31, s30, 2')
    a.I(f's_add_u32 s31, s31, 0x{WS_SEL:x}')
    key = va()
    a.I(f'buffer_load_dword {vr(key)}, off, s[16:19], s31')
    a.I('s_lshl_b32 s24, s2, 6')
    for jj in range(1, 4):
        a.I(f's_add_u32 s{24 + jj}, s24, {jj * 65536}')
    P = va(16)
    for jj in range(4):
        a.I(f'buffer_load_dwordx4 {vr(P + 4 * jj, 4)}, {vr(voff)}, s[12:15], s{24 + jj} offen')
    GBv = va(4)
    a.I('s_and_b32 s32, s2, 31')
    a.I('s_lshl_b32 s33, s32, 6')
    a.I(f's_add_u32 s33, s33, 0x{WS_MOD + 5 * 2048:x}')
    t0, t1, vo = va(), va(), va()
    a.I(f'v_lshlrev_b32 {vr(t0)}, 4, {vr(vc)}')
    a.I(f'buffer_load_dwordx4 {vr(GBv, 4)}, {vr(t0)}, s[16:19], s33 offen')
    a.I(f'v_and_b32 {vr(vo)}, 0x7ff, {vr(key)}')
    a.I(f'v_sub_u32 {vr(vo)}, 0x7ff, {vr(vo)}')
    a.I(f'v_lshlrev_b32 {vr(vo)}, 10, {vr(vo)}')
    a.I(f'v_lshl_add_u32 {vr(vo)}, {vr(vc)}, 3, {vr(vo)}')
    a.I('s_lshl_b32 s34, s32, 5')
    OLD = va(2)
    a.I(f'buffer_load_dwordx2 {vr(OLD, 2)}, {vr(vo)}, s[20:23], s34 offen')
    a.I(f'v_ashrrev_i32 {vr(t0)}, 31, {vr(key)}')
    a.I(f'v_not_b32 {vr(t0)}, {vr(t0)}')
    a.I(f'v_or_b32 {vr(t0)}, 0x80000000, {vr(t0)}')
    a.I(f'v_xor_b32 {vr(t0)}, {vr(t0)}, {vr(key)}')
    a.I(f'v_mul_f32 {vr(t0)}, {lit(-LOG2E)}, {vr(t0)}')
    a.I(f'v_exp_f32 {vr(t0)}, {vr(t0)}')
    a.I(f'v_add_f32 {vr(t0)}, 1.0, {vr(t0)}')
    a.I(f'v_rcp_f32 {vr(t0)}, {vr(t0)}')
    for d in range(4):
        a.I(f'v_add_f32 {vr(P + d)}, {vr(P + d)}, {vr(P + 4 + d)}')
        a.I(f'v_add_f32 {vr(P + 8 + d)}, {vr(P + 8 + d)}, {vr(P + 12 + d)}')
    for d in range(4):
        a.I(f'v_add_f32 {vr(P + d)}, {vr(P + d)}, {vr(P + 8 + d)}')
    for ror in (4, 8):
        for d in range(4):
            a.I(f'v_add_f32_dpp {vr(P + d)}, {vr(P + d)}, {vr(P + d)} row_ror:{ror} {DPP_ALL}')
    for sw in ('v_permlane16_swap_b32', 'v_permlane32_swap_b32'):
        for d in range(4):
            a.I(f'v_mov_b32 {vr(P + 4 + d)}, {vr(P + d)}')
        for d in range(4):
            a.I(f'{sw} {vr(P + d)}, {vr(P + 4 + d)}')
        for d in range(4):
            a.I(f'v_add_f32 {vr(P + d)}, {vr(P + d)}, {vr(P + 4 + d)}')
    for d in range(4):
        a.I(f'v_mul_f32 {vr(P + d)}, {vr(P + d)}, {vr(t0)}')
    for d in range(2):
        a.I(f'v_lshlrev_b32 {vr(P + 8 + 2 * d)}, 16, {vr(OLD + d)}')
        a.I(f'v_and_b32 {vr(P + 9 + 2 * d)}, 0xffff0000, {vr(OLD + d)}')
    for d in range(4):
        a.I(f'v_fmac_f32 {vr(P + 8 + d)}, {vr(P + d)}, {vr(GBv + d)}')
    for d in range(2):
        a.I(f'v_cvt_pk_bf16_f32 {vr(OLD + d)}, {vr(P + 8 + 2 * d)}, {vr(P + 9 + 2 * d)}')
    a.I('s_mov_b64 exec, 15')
    a.I(f'buffer_store_dwordx2 {vr(OLD, 2)}, {vr(vo)}, s[20:23], s34 offen')
    a.label('K4_END', end_only=True)
    a.I('s_endpgm')
    return name, (64, 64, 0), a.desc(name)


def knop(a):
    name = 'nop_kernel'
    a.begin_kernel(name)
    a.I('s_endpgm')
    return name, (256, 64, 0), a.desc(name)


def build(path, extra_nops=0):
    a = Asm()
    ks = [k1(a), k2(a), k3(a), k4(a)]
    launches = list(ks)
    if extra_nops:
        n = knop(a)
        ks.append(n)
        launches += [n] * extra_nops
    head = ['; generated by work/gen1.py']
    for name, (g, b, lds), _ in launches:
        head.append(f'; @launch kernel={name} grid=({g},1,1) block=({b},1,1) lds={lds}')
    head += ['.amdgcn_target "amdgcn-amd-amdhsa--gfx950"', '.text']
    tail = ['.section .rodata,"a"'] + [d for _, _, d in ks]
    open(path, 'w').write('\n'.join(head + a.out + tail) + '\n')


if __name__ == '__main__':
    out = sys.argv[1] if len(sys.argv) > 1 else f'cdna_kernels/{NAME}.s'
    build(out, int(sys.argv[2]) if len(sys.argv) > 2 else 0)
```

```python
import re
import struct
import copy

REG_RE = re.compile(r'^(-|abs\()?([vsa])(?:(\d+)|\[(\d+):(\d+)\])\)?$')
TRANS = ('v_exp_f32', 'v_log_f32', 'v_rcp_f32', 'v_rsq_f32', 'v_sqrt_f32', 'v_sin_f32', 'v_cos_f32')


def f2u(x):
    return struct.unpack('<I', struct.pack('<f', x))[0]


def lit(x):
    return '0x%08x' % f2u(x)


def vr(b, n=1):
    return 'v%d' % b if n == 1 else 'v[%d:%d]' % (b, b + n - 1)


def sr(b, n=1):
    return 's%d' % b if n == 1 else 's[%d:%d]' % (b, b + n - 1)


def regs_of(op):
    op = op.strip()
    if op == 'vcc':
        return {('s', 106), ('s', 107)}
    if op in ('vcc_lo', 'vcc_hi'):
        return {('s', 106 if op == 'vcc_lo' else 107)}
    if op in ('exec_lo', 'exec_hi'):
        return {('s', 126 if op == 'exec_lo' else 127)}
    if op == 'exec':
        return {('s', 126), ('s', 127)}
    if op == 'm0':
        return {('s', 124)}
    m = REG_RE.match(op)
    if not m:
        return set()
    k = m.group(2)
    if m.group(3) is not None:
        return {(k, int(m.group(3)))}
    return {(k, i) for i in range(int(m.group(4)), int(m.group(5)) + 1)}


def split_ops(rest):
    ops, depth, cur = [], 0, ''
    for ch in rest:
        if ch in '[(':
            depth += 1
        if ch in '])':
            depth -= 1
        if ch == ',' and depth == 0:
            ops.append(cur.strip())
            cur = ''
        else:
            cur += ch
    if cur.strip():
        ops.append(cur.strip())
    mods = ''
    if ops:
        last = ops[-1].split(None, 1)
        ops[-1] = last[0]
        mods = last[1] if len(last) > 1 else ''
    return ops, mods


class Ins:
    def __init__(self, text):
        self.text = text
        p = text.split(None, 1)
        self.op = op = p[0]
        self.ops, self.mods = split_ops(p[1]) if len(p) > 1 else ([], '')
        ops = self.ops
        R = [regs_of(o) for o in ops]
        self.wr, self.rd = set(), set()
        self.cls = 'other'
        self.srcc = set()
        self.srcab = set()
        self.passes = 0
        self.store_data = set()
        self.is_dpp = '_dpp' in op
        self.is_trans = any(op.startswith(t) for t in TRANS)
        self.is_dot = op.startswith('v_dot')
        self.is_sdwa = '_sdwa' in op
        allr = set().union(*R) if R else set()
        if op.startswith('v_mfma'):
            self.cls = 'mfma'
            self.wr = R[0]
            self.srcab = R[1] | R[2]
            self.srcc = R[3]
            self.rd = self.srcab | self.srcc
            self.passes = 8 if '32x32' in op else 4
        elif op.startswith('v_'):
            self.cls = 'valu'
            if op.startswith(('v_swap', 'v_permlane16_swap', 'v_permlane32_swap')):
                self.wr = allr
                self.rd = allr
            elif op.startswith(('v_add_co', 'v_sub_co', 'v_addc_co', 'v_subb_co')):
                self.wr = R[0] | R[1]
                self.rd = set().union(*R[2:])
            elif op == 'v_nop':
                pass
            else:
                self.wr = R[0]
                self.rd = set().union(*R[1:]) if len(R) > 1 else set()
                if op.startswith(('v_fmac', 'v_dot2c', 'v_writelane')) or self.is_dpp:
                    self.rd |= R[0]
                if op.startswith('v_cmpx'):
                    self.wr |= regs_of('exec')
        elif op.startswith(('buffer_', 'global_')):
            self.cls = 'vmem'
            if op in ('buffer_inv', 'buffer_wbl2'):
                pass
            elif '_load' in op:
                if re.search(r'\blds\b', self.mods) or '_lds_' in op:
                    self.rd = allr | regs_of('m0')
                    self.lds_dma = True
                else:
                    self.wr = R[0]
                    self.rd = set().union(*R[1:])
                    if 'd16' in op:
                        self.rd |= R[0]
            elif '_atomic' in op:
                self.rd = allr
                if 'sc0' in self.mods:
                    self.wr = R[0]
            else:
                self.rd = allr
                if 'x4' in op or 'x3' in op:
                    self.store_data = R[0] if op.startswith('buffer_') else R[1]
        elif op.startswith('ds_'):
            self.cls = 'ds'
            if op.startswith(('ds_read', 'ds_bpermute', 'ds_permute', 'ds_swizzle')) or '_rtn' in op:
                self.wr = R[0]
                self.rd = set().union(*R[1:])
            else:
                self.rd = allr
        elif op.startswith(('s_load', 's_buffer_load', 's_memtime', 's_memrealtime')):
            self.cls = 'smem'
            self.wr = R[0]
            self.rd = set().union(*R[1:]) if len(R) > 1 else set()
        elif op.startswith('s_'):
            self.cls = 'salu'
            if op.startswith(('s_cmp', 's_bitcmp', 's_cbranch', 's_branch', 's_nop', 's_waitcnt', 's_barrier',
                              's_endpgm', 's_sleep', 's_setprio')):
                self.rd = allr
            else:
                self.wr = R[0]
                self.rd = set().union(*R[1:]) if len(R) > 1 else set()
                if 'saveexec' in op:
                    self.wr |= regs_of('exec')
        self.states = 1
        if op == 's_nop':
            self.states = int(ops[0], 0) + 1


def V(s):
    return {r for r in s if r[0] in 'va'}


def S(s):
    return {r for r in s if r[0] == 's'}


def need(prod, cons):
    n = 0
    touch = cons.rd | cons.wr
    if prod.cls == 'valu':
        wv, ws = V(prod.wr), S(prod.wr)
        if cons.cls == 'mfma' and wv & cons.rd:
            n = max(n, 3 if prod.is_dot else 2)
        if cons.cls == 'valu':
            if cons.is_dpp and wv & cons.rd:
                n = max(n, 2)
            if cons.op.startswith('v_permlane') and wv & cons.rd:
                n = max(n, 2)
            if cons.op.startswith(('v_readlane', 'v_readfirstlane')) and wv & cons.rd:
                n = max(n, 1)
            if ws & cons.rd:
                n = max(n, 4 if cons.op.startswith(('v_readlane', 'v_writelane')) else 2)
            if prod.is_sdwa and wv & touch:
                n = max(n, 1)
        if prod.is_trans and wv & cons.rd:
            n = max(n, 1)
        if prod.is_dot and wv & touch:
            same_c = cons.op == prod.op and not (wv & (regs_of(cons.ops[1]) | regs_of(cons.ops[2])))
            if not same_c:
                n = max(n, 3)
        if cons.cls == 'vmem' and ws & cons.rd:
            n = max(n, 5)
        if cons.cls in ('salu', 'smem') and ws & cons.rd:
            n = max(n, 1)
        if regs_of('exec') & ws:
            n = max(n, 5)
    elif prod.cls == 'mfma':
        p = prod.passes
        big = {4: 8, 8: 12}[p]
        if cons.cls == 'mfma':
            if prod.wr & cons.srcab:
                n = max(n, big)
            if prod.wr & cons.srcc and not (prod.wr == cons.srcc and cons.passes == p):
                n = max(n, big - 2)
            if prod.wr & cons.wr and prod.wr != cons.srcc:
                n = max(n, big)
        elif prod.wr & touch:
            n = max(n, big)
        if cons.cls == 'valu' and prod.srcc & cons.wr:
            n = max(n, {4: 3, 8: 7}[p])
    elif prod.cls == 'vmem':
        if prod.store_data & cons.wr:
            n = max(n, 2)
    elif prod.cls == 'salu':
        if regs_of('m0') & prod.wr and getattr(cons, 'lds_dma', False):
            n = max(n, 1)
    return n


class State:
    def __init__(self):
        self.hist = []
        self.vm = []
        self.lgkm = []

    def key(self):
        return ([sorted(x) for x in self.vm], [(k, sorted(x)) for k, x in self.lgkm])


class Asm:
    def __init__(self):
        self.out = []
        self.st = State()
        self.snap = {}
        self.dead = False
        self.maxv = -1
        self.maxs = -1
        self.nops = 0

    def raw(self, text):
        self.out.append(text)

    def c(self, text):
        self.out.append('    ; ' + text)

    def begin_kernel(self, name):
        self.st = State()
        self.snap = {}
        self.dead = False
        self.maxv = 0
        self.maxs = 2
        self.raw('.globl %s' % name)
        self.raw('.p2align 8')
        self.raw('.type %s,@function' % name)
        self.raw('%s:' % name)

    def _push(self, ins):
        self.out.append('    ' + ins.text)
        h = self.st.hist
        h.append(ins)
        if len(h) > 24:
            del h[0]

    def _wait(self, vm=None, lg=None):
        parts = []
        st = self.st
        if vm is not None:
            vm = min(vm, 63)
            parts.append('vmcnt(%d)' % vm)
            del st.vm[:max(0, len(st.vm) - vm)]
        if lg is not None:
            lg = min(lg, 15)
            parts.append('lgkmcnt(%d)' % lg)
            del st.lgkm[:max(0, len(st.lgkm) - lg)]
        self._push(Ins('s_waitcnt ' + ' '.join(parts)))

    def wait(self, vm=None, lg=None):
        if lg is not None and lg > 0:
            assert all(k == 'ds' for k, _ in self.st.lgkm), 'counted lgkmcnt with SMEM outstanding'
        self._wait(vm, lg)

    def full_wait(self):
        self._wait(0, 0)

    def pad_all(self):
        rem = 0
        dist = 0
        for p in reversed(self.st.hist):
            w = 0
            if p.cls == 'mfma':
                w = {4: 8, 8: 12}[p.passes]
            elif p.cls == 'valu':
                w = 5 if S(p.wr) else 3
            elif p.cls == 'vmem' and p.store_data:
                w = 2
            elif p.cls == 'salu' and regs_of('m0') & p.wr:
                w = 1
            rem = max(rem, w - dist)
            dist += p.states
        if rem > 0:
            self._push(Ins('s_nop %d' % (rem - 1)))

    def I(self, text):
        assert not self.dead, 'emitting into dead code: ' + text
        ins = Ins(text)
        st = self.st
        for k, i in ins.rd | ins.wr:
            if k == 'v':
                self.maxv = max(self.maxv, i)
            if k == 's' and i < 102:
                self.maxs = max(self.maxs, i)
        touch = ins.rd | ins.wr
        vm = lg = None
        for idx in range(len(st.vm) - 1, -1, -1):
            if st.vm[idx] & touch:
                vm = len(st.vm) - 1 - idx
                break
        for idx in range(len(st.lgkm) - 1, -1, -1):
            if st.lgkm[idx][1] & touch:
                lg = len(st.lgkm) - 1 - idx
                if any(k != 'ds' for k, _ in st.lgkm):
                    lg = 0
                break
        if vm is not None or lg is not None:
            self._wait(vm, lg)
        is_branch = ins.op.startswith(('s_cbranch', 's_branch'))
        if is_branch:
            self.pad_all()
        rem = 0
        dist = 0
        for p in reversed(st.hist):
            rem = max(rem, need(p, ins) - dist)
            dist += p.states
            if dist > 20:
                break
        if rem > 0:
            self.nops += rem
            self._push(Ins('s_nop %d' % (rem - 1)))
        self._push(ins)
        if ins.cls == 'vmem':
            st.vm.append(set(ins.wr))
            assert len(st.vm) <= 63, 'too many VMEM ops outstanding'
        elif ins.cls == 'ds':
            st.lgkm.append(('ds', set(ins.wr)))
        elif ins.cls == 'smem':
            st.lgkm.append(('smem', set(ins.wr)))
        if is_branch:
            tgt = ins.ops[0]
            self.snap.setdefault(tgt, []).append(copy.deepcopy(st.key()))
            self.snap.setdefault(tgt + '#st', []).append(copy.deepcopy((st.vm, st.lgkm)))
            if ins.op == 's_branch':
                self.dead = True
        if ins.op == 's_endpgm':
            self.dead = True

    def label(self, name, end_only=False):
        keys = list(self.snap.get(name, []))
        sts = self.snap.get(name + '#st', [])
        if not self.dead:
            self.pad_all()
            keys.append(self.st.key())
        if not end_only:
            assert all(k == keys[0] for k in keys), 'pending-load state differs at label ' + name
        if self.dead:
            self.st = State()
            if sts:
                self.st.vm, self.st.lgkm = copy.deepcopy(sts[0])
        self.st.hist = []
        self.dead = False
        self.raw('%s:' % name)

    STAMP_BASE = 0x1000000
    stamps_on = False

    def stamp_init(self, kidx):
        self.kidx = kidx
        self.nstamp = 0
        if self.stamps_on:
            self.I('s_memrealtime s[70:71]')
            self.I('s_load_dwordx2 s[96:97], s[0:1], 112')
            self.I('v_readfirstlane_b32 s95, v0')
            self.I('s_mov_b32 s94, s2')
            self.nstamp = 1

    def stamp(self, idx=None):
        if self.stamps_on:
            if idx is None:
                idx = self.nstamp
            self.nstamp = idx + 1
            assert idx < 10
            self.I('s_memrealtime s[%d:%d]' % (70 + 2 * idx, 71 + 2 * idx))

    def stamp_flush(self, drain=True):
        if not self.stamps_on:
            return
        if drain:
            self.stamp()
            self.wait(vm=0)
        self.stamp()
        n = self.nstamp
        self.wait(lg=0)
        self.I('s_lshr_b32 s95, s95, 6')
        self.I('s_lshl_b32 s94, s94, 4')
        self.I('s_add_u32 s94, s94, s95')
        self.I('s_lshl_b32 s94, s94, 6')
        self.I('s_add_u32 s94, s94, 0x%x' % (self.STAMP_BASE + self.kidx * 512 * 16 * 64))
        self.I('s_mov_b32 s98, 0x2000000')
        self.I('s_mov_b32 s99, 0x20000')
        self.I('s_mov_b64 exec, 1')
        self.I('s_getreg_b32 s93, hwreg(HW_REG_XCC_ID)')
        self.I('s_getreg_b32 s92, hwreg(HW_REG_HW_ID)')
        for i in range(n):
            self.I('v_mov_b32 v1, s%d' % (70 + 2 * i))
            self.I('buffer_store_dword v1, off, s[96:99], s94 offset:%d' % (4 * i))
        self.I('v_mov_b32 v1, s93')
        self.I('buffer_store_dword v1, off, s[96:99], s94 offset:56')
        self.I('v_mov_b32 v1, s92')
        self.I('buffer_store_dword v1, off, s[96:99], s94 offset:52')
        self.I('v_mov_b32 v1, %d' % n)
        self.I('buffer_store_dword v1, off, s[96:99], s94 offset:60')

    def srd(self, d, base, nbytes):
        self.I('s_mov_b32 %s, %s' % (sr(d), sr(base)))
        self.I('s_mov_b32 %s, %s' % (sr(d + 1), sr(base + 1)))
        self.I('s_mov_b32 %s, 0x%x' % (sr(d + 2), nbytes))
        self.I('s_mov_b32 %s, 0x20000' % sr(d + 3))

    def srd_off(self, d, base, off, nbytes):
        self.I('s_add_u32 %s, %s, 0x%x' % (sr(d), sr(base), off))
        self.I('s_addc_u32 %s, %s, 0' % (sr(d + 1), sr(base + 1)))
        self.I('s_mov_b32 %s, 0x%x' % (sr(d + 2), nbytes))
        self.I('s_mov_b32 %s, 0x20000' % sr(d + 3))

    def desc(self, name):
        nv = self.maxv + 1
        acc = max(4, (nv + 3) // 4 * 4)
        return '\n'.join([
            '.p2align 6',
            '.amdhsa_kernel %s' % name,
            '  .amdhsa_next_free_vgpr %d' % nv,
            '  .amdhsa_next_free_sgpr %d' % (self.maxs + 1),
            '  .amdhsa_accum_offset %d' % acc,
            '  .amdhsa_group_segment_fixed_size 0',
            '  .amdhsa_kernarg_size 120',
            '  .amdhsa_user_sgpr_count 2',
            '  .amdhsa_user_sgpr_kernarg_segment_ptr 1',
            '  .amdhsa_system_sgpr_workgroup_id_x 1',
            '.end_amdhsa_kernel'])


class Alloc:
    def __init__(self, start, limit):
        self.n = start
        self.limit = limit

    def __call__(self, n=1, align=None):
        if align is None:
            align = 1 if n == 1 else (2 if n < 4 else 4)
        self.n = (self.n + align - 1) // align * align
        b = self.n
        self.n += n
        assert self.n <= self.limit, 'out of registers'
        return b
```

```python
import sys
import math
from asmlib import *

NAME = 'adaLN_cond__spectral_fnet__moe_arch_mod__prompt'

NF = 112
NMAIN = 129
WS_A = 0x000000
WS_MODF = 0x200000
WS_TAB = 0x201000
WS_ZERO = 0x204000
WS_KEY = WS_ZERO
WS_DONE = WS_ZERO + 0x4800
ZERO_BYTES = 0x5000
WS_SENT = 0x210000
WS_H2 = WS_SENT
WS_PART = WS_SENT + 0x48000
SENT_BYTES = 0x48000 + 64 * NF * 64
WS_END = WS_SENT + SENT_BYTES

DPP_ALL = 'row_mask:0xf bank_mask:0xf'
LOG2E = 1.4426950408889634
SPIN_MAX = 200000

S_X, S_WR, S_GATE, S_UP, S_DOWN, S_C, S_WMOD, S_OUT, S_DBG, S_WS = 4, 8, 10, 12, 14, 16, 18, 20, 22, 6


def load_args(a):
    a.I('s_load_dwordx2 s[4:5], s[0:1], 0')
    a.I('s_load_dwordx2 s[6:7], s[0:1], 112')
    a.I('s_load_dwordx16 s[8:23], s[0:1], 48')


def lane_ids(a, va):
    vi, vq, vw = va(), va(), va()
    a.I(f'v_and_b32 {vr(vi)}, 15, v0')
    a.I(f'v_bfe_u32 {vr(vq)}, v0, 4, 2')
    a.I(f'v_lshrrev_b32 {vr(vw)}, 6, v0')
    return vi, vq, vw


def round_bf16_pair(a, x0, x1, tmp):
    a.I(f'v_cvt_pk_bf16_f32 {vr(tmp)}, {vr(x0)}, {vr(x1)}')
    a.I(f'v_lshlrev_b32 {vr(x0)}, 16, {vr(tmp)}')
    a.I(f'v_and_b32 {vr(x1)}, 0xffff0000, {vr(tmp)}')


def unpack8(a, dst, src):
    for d in range(4):
        a.I(f'v_lshlrev_b32 {vr(dst + 2 * d)}, 16, {vr(src + d)}')
        a.I(f'v_and_b32 {vr(dst + 2 * d + 1)}, 0xffff0000, {vr(src + d)}')


K1_PITCH = 288


def role_k1_main(a):
    PITCH = K1_PITCH
    va = Alloc(1, 256)
    vi, vq, vw = lane_ids(a, va)
    voff0, voff1 = va(), va()
    t0, t1 = va(), va()
    a.I('s_lshr_b32 s41, s2, 5')
    a.I(f'v_lshl_add_u32 {vr(t0)}, s41, 1, {vr(vw)}')
    a.I(f'v_and_b32 {vr(t0)}, 7, {vr(t0)}')
    a.I(f'v_lshl_add_u32 {vr(t0)}, {vr(t0)}, 3, {vr(vq)}')
    a.I(f'v_lshlrev_b32 {vr(voff0)}, 15, {vr(t0)}')
    a.I(f'v_lshl_add_u32 {vr(voff0)}, {vr(vi)}, 4, {vr(voff0)}')
    a.I(f'v_add_u32 {vr(voff1)}, 0x20000, {vr(voff0)}')
    a.I('s_and_b32 s40, s2, 31')
    a.I('s_lshl_b32 s42, s40, 10')
    for j in range(4):
        a.I(f's_add_u32 s43, s41, {j}')
        a.I('s_and_b32 s43, s43, 3')
        a.I('s_lshl_b32 s43, s43, 8')
        a.I(f's_add_u32 s{44 + j}, s42, s43')
    a.srd(24, S_X, 2048 * 1024)
    a.stamp()
    X = [[va(4) for j in range(4)] for h in range(2)]
    for j in range(4):
        for h in range(2):
            a.I(f'buffer_load_dwordx4 {vr(X[h][j], 4)}, {vr((voff0, voff1)[h])}, s[24:27], s{44 + j} offen')
    a.srd(28, S_WS, 0x200000)
    a.stamp()
    vlw, vlr, vst = va(), va(), va()
    a.I(f'v_mul_u32_u24 {vr(vlw)}, {PITCH}, {vr(t0)}')
    a.I(f'v_lshl_add_u32 {vr(vlw)}, {vr(vi)}, 4, {vr(vlw)}')
    vmt, vcb = va(), va()
    a.I(f'v_and_b32 {vr(vmt)}, 3, {vr(vw)}')
    a.I(f'v_lshrrev_b32 {vr(vcb)}, 2, {vr(vw)}')
    a.I(f'v_lshrrev_b32 {vr(t0)}, 2, {vr(vi)}')
    a.I(f'v_lshl_add_u32 {vr(t0)}, {vr(vq)}, 2, {vr(t0)}')
    a.I(f'v_mul_u32_u24 {vr(vlr)}, {PITCH}, {vr(t0)}')
    a.I(f'v_lshl_add_u32 {vr(vlr)}, {vr(vcb)}, 7, {vr(vlr)}')
    a.I(f'v_and_b32 {vr(t0)}, 3, {vr(vi)}')
    a.I(f'v_lshl_add_u32 {vr(vlr)}, {vr(t0)}, 3, {vr(vlr)}')
    a.I(f'v_lshlrev_b32 {vr(vst)}, 19, {vr(vmt)}')
    a.I(f'v_lshl_add_u32 {vr(vst)}, {vr(vq)}, 17, {vr(vst)}')
    a.I(f'v_lshl_add_u32 {vr(vst)}, {vr(vcb)}, 8, {vr(vst)}')
    a.I(f'v_lshl_add_u32 {vr(vst)}, {vr(vi)}, 4, {vr(vst)}')
    a.I('s_lshl_b32 s48, s40, 11')
    a.I('s_lshl_b32 s49, s41, 9')
    a.I('s_add_u32 s48, s48, s49')
    a.I('s_add_u32 s49, s48, 0x10000')
    vrho, vG, vphi, va0 = va(), va(), va(), va()
    a.I(f'v_lshl_add_u32 {vr(vrho)}, {vr(vmt)}, 4, {vr(vi)}')
    a.I(f'v_lshrrev_b32 {vr(vG)}, 1, {vr(vrho)}')
    a.I(f'v_and_b32 {vr(vphi)}, 1, {vr(vrho)}')
    a.I(f'v_cmp_eq_u32 vcc, 1, {vr(vrho)}')
    a.I(f'v_cndmask_b32_e64 {vr(vG)}, {vr(vG)}, 32, vcc')
    a.I(f'v_cndmask_b32_e64 {vr(vphi)}, {vr(vphi)}, 0, vcc')
    a.I(f'v_cvt_f32_u32 {vr(vG)}, {vr(vG)}')
    a.I(f'v_cvt_f32_u32 {vr(vphi)}, {vr(vphi)}')
    a.I(f'v_mul_f32 {vr(vG)}, {lit(1 / 64)}, {vr(vG)}')
    a.I(f'v_mul_f32 {vr(vphi)}, {lit(0.25)}, {vr(vphi)}')
    a.I(f'v_cvt_f32_u32 {vr(t0)}, {vr(vq)}')
    a.I(f'v_mul_f32 {vr(t0)}, 4.0, {vr(t0)}')
    a.I(f'v_fma_f32 {vr(va0)}, {vr(vG)}, {vr(t0)}, {vr(vphi)}')
    AF = [va(4), va(4)]
    tmp = va(8)
    for ks in range(2):
        for j in range(8):
            cst = 32 * ks + 16 * (j // 4) + j % 4
            a.I(f'v_fmamk_f32 {vr(tmp + j)}, {vr(vG)}, {lit(cst)}, {vr(va0)}')
        for j in range(8):
            a.I(f'v_cos_f32 {vr(tmp + j)}, {vr(tmp + j)}')
        for j in range(4):
            a.I(f'v_cvt_pk_bf16_f32 {vr(AF[ks] + j)}, {vr(tmp + 2 * j)}, {vr(tmp + 2 * j + 1)}')
    sm = [va(), va()]
    sq = [va(), va()]
    a.I('s_mov_b32 s50, 0x3f803f80')
    for j in range(4):
        for d in range(4):
            for h in range(2):
                x = vr(X[h][j] + d)
                first = j == 0 and d == 0
                a.I(f'v_dot2_f32_bf16 {vr(sm[h])}, {x}, s50, {"0" if first else vr(sm[h])}')
                a.I(f'v_dot2_f32_bf16 {vr(sq[h])}, {x}, {x}, {"0" if first else vr(sq[h])}')
    a.stamp()
    for ror in (8, 4, 2, 1):
        for r in (sm[0], sq[0], sm[1], sq[1]):
            a.I(f'v_add_f32_dpp {vr(r)}, {vr(r)}, {vr(r)} row_ror:{ror} {DPP_ALL}')
    for h in range(2):
        a.I(f'v_mul_f32 {vr(sm[h])}, {lit(1 / 512)}, {vr(sm[h])}')
        a.I(f'v_mul_f32 {vr(sq[h])}, {lit(1 / 512)}, {vr(sq[h])}')
    for h in range(2):
        a.I(f'v_fma_f32 {vr(sq[h])}, -{vr(sm[h])}, {vr(sm[h])}, {vr(sq[h])}')
    for h in range(2):
        a.I(f'v_max_f32 {vr(sq[h])}, 0, {vr(sq[h])}')
    round_bf16_pair(a, sq[0], sq[1], t0)
    round_bf16_pair(a, sm[0], sm[1], t1)
    for h in range(2):
        a.I(f'v_add_f32 {vr(sq[h])}, {lit(1e-5)}, {vr(sq[h])}')
    round_bf16_pair(a, sq[0], sq[1], t0)
    for h in range(2):
        a.I(f'v_sqrt_f32 {vr(sq[h])}, {vr(sq[h])}')
    round_bf16_pair(a, sq[0], sq[1], t0)
    for h in range(2):
        a.I(f'v_rcp_f32 {vr(sq[h])}, {vr(sq[h])}')
    N = [va(4), va(4)]
    for h in range(2):
        unpack8(a, tmp, X[h][0])
        for d in range(8):
            a.I(f'v_sub_f32 {vr(tmp + d)}, {vr(tmp + d)}, {vr(sm[h])}')
        for d in range(4):
            round_bf16_pair(a, tmp + 2 * d, tmp + 2 * d + 1, N[h] + d)
        for d in range(8):
            a.I(f'v_mul_f32 {vr(tmp + d)}, {vr(tmp + d)}, {vr(sq[h])}')
        for d in range(4):
            a.I(f'v_cvt_pk_bf16_f32 {vr(N[h] + d)}, {vr(tmp + 2 * d)}, {vr(tmp + 2 * d + 1)}')
        a.I(f'ds_write_b128 {vr(vlw)}, {vr(N[h], 4)} offset:{4 * h * PITCH}')
    a.stamp()
    a.wait(lg=0)
    a.I('s_barrier')
    a.stamp()
    B = [[va(4) for ks in range(2)] for c in range(4)]
    for ks in range(2):
        for c in range(4):
            for half in range(2):
                off = (32 * ks + 16 * half) * PITCH + 32 * c
                a.I(f'ds_read_b64_tr_b16 {vr(B[c][ks] + 2 * half, 2)}, {vr(vlr)} offset:{off}')
    D = [va(4) for c in range(4)]
    for ks in range(2):
        for c in range(4):
            a.I(f'v_mfma_f32_16x16x32_bf16 {vr(D[c], 4)}, {vr(AF[ks], 4)}, {vr(B[c][ks], 4)}, {"0" if ks == 0 else vr(D[c], 4)}')
    O = [va(4), va(4)]
    for c in range(4):
        for gg in range(2):
            a.I(f'v_cvt_pk_bf16_f32 {vr(O[gg] + c)}, {vr(D[c] + 2 * gg)}, {vr(D[c] + 2 * gg + 1)}')
    for gg in range(2):
        a.I(f'buffer_store_dwordx4 {vr(O[gg], 4)}, {vr(vst)}, s[28:31], s{48 + gg} offen{ST_A}')


def role_mod(a, base, end_label):
    va = Alloc(1, 256)
    a.I(f's_sub_u32 s40, s2, {base}')
    a.I('s_and_b32 s41, s40, 7')
    a.I('s_lshr_b32 s42, s40, 4')
    a.I('s_lshl_b32 s42, s42, 3')
    a.I('s_add_u32 s41, s41, s42')
    a.I('s_lshl_b32 s41, s41, 1')
    a.I('s_bfe_u32 s42, s40, 0x10003')
    a.I('s_add_u32 s41, s41, s42')
    a.I('s_lshl_b32 s44, s41, 6')
    for jj in range(1, 4):
        a.I(f's_add_u32 s{44 + jj}, s44, {jj * 128 * 6144}')
    vrow, vc4, voff, vco = va(), va(), va(), va()
    a.I(f'v_lshrrev_b32 {vr(vrow)}, 2, v0')
    a.I(f'v_and_b32 {vr(vc4)}, 3, v0')
    a.I(f'v_mul_u32_u24 {vr(voff)}, 6144, {vr(vrow)}')
    a.I(f'v_lshl_add_u32 {vr(voff)}, {vr(vc4)}, 4, {vr(voff)}')
    a.I(f'v_lshlrev_b32 {vr(vco)}, 1, {vr(vrow)}')
    a.srd(24, S_C, 1024)
    a.srd(28, S_WMOD, 512 * 6144)
    W = [va(4) for jj in range(4)]
    cv = va(4)
    for jj in range(4):
        a.I(f'buffer_load_ushort {vr(cv + jj)}, {vr(vco)}, s[24:27], 0 offen offset:{256 * jj}')
    for jj in range(4):
        a.I(f'buffer_load_dwordx4 {vr(W[jj], 4)}, {vr(voff)}, s[28:31], s{44 + jj} offen')
    a.srd_off(32, S_WS, WS_MODF, 0x1000)
    a.srd_off(36, S_WS, WS_TAB, 0x1000)
    a.stamp(1)
    e = va(4)
    for jj in range(4):
        a.I(f'v_lshlrev_b32 {vr(cv + jj)}, 16, {vr(cv + jj)}')
    for jj in range(4):
        a.I(f'v_mul_f32 {vr(e + jj)}, {lit(-LOG2E)}, {vr(cv + jj)}')
    for jj in range(4):
        a.I(f'v_exp_f32 {vr(e + jj)}, {vr(e + jj)}')
    for jj in range(4):
        a.I(f'v_add_f32 {vr(e + jj)}, 1.0, {vr(e + jj)}')
    for jj in range(4):
        a.I(f'v_rcp_f32 {vr(e + jj)}, {vr(e + jj)}')
    for jj in range(4):
        a.I(f'v_mul_f32 {vr(cv + jj)}, {vr(cv + jj)}, {vr(e + jj)}')
    round_bf16_pair(a, cv, cv + 1, e)
    round_bf16_pair(a, cv + 2, cv + 3, e + 1)
    vl, t0 = va(), va()
    a.I(f'v_lshrrev_b32 {vr(vl)}, 4, v0')
    a.I(f'v_lshlrev_b32 {vr(vl)}, 7, {vr(vl)}')
    a.I(f'v_lshl_add_u32 {vr(vl)}, {vr(vc4)}, 5, {vr(vl)}')
    a.I(f'v_readfirstlane_b32 s54, v0')
    acc = va(8)
    tmp = va(8)
    for jj in range(4):
        unpack8(a, tmp, W[jj])
        for d in range(8):
            if jj == 0:
                a.I(f'v_mul_f32 {vr(acc + d)}, {vr(tmp + d)}, {vr(cv + jj)}')
            else:
                a.I(f'v_fmac_f32 {vr(acc + d)}, {vr(tmp + d)}, {vr(cv + jj)}')
    a.stamp()
    for ror in (4, 8):
        for d in range(8):
            a.I(f'v_add_f32_dpp {vr(acc + d)}, {vr(acc + d)}, {vr(acc + d)} row_ror:{ror} {DPP_ALL}')
    a.I('s_mov_b32 exec_lo, 0x000f000f')
    a.I('s_mov_b32 exec_hi, 0x000f000f')
    a.I(f'ds_write_b128 {vr(vl)}, {vr(acc, 4)}')
    a.I(f'ds_write_b128 {vr(vl)}, {vr(acc + 4, 4)} offset:16')
    a.I('s_mov_b64 exec, -1')
    a.wait(lg=0)
    a.I('s_barrier')
    a.I('s_cmp_ge_u32 s54, 64')
    a.I(f's_cbranch_scc1 {end_label}')
    a.stamp()
    vcol = va()
    a.I(f'v_and_b32 {vr(vcol)}, 31, v0')
    a.I(f'v_lshrrev_b32 {vr(t0)}, 5, v0')
    a.I(f'v_lshlrev_b32 {vr(vl)}, 11, {vr(t0)}')
    a.I(f'v_lshl_add_u32 {vr(vl)}, {vr(vcol)}, 2, {vr(vl)}')
    a.I(f'v_add_u32 {vr(t0)}, 1024, {vr(vl)}')
    P = va(16)
    for p in range(8):
        a.I(f'ds_read2_b32 {vr(P + 2 * p, 2)}, {vr(vl if p < 4 else t0)} offset0:{64 * (p % 4)} offset1:{64 * (p % 4) + 32}')
    a.I('s_lshr_b32 s42, s41, 4')
    a.I('s_cmp_eq_u32 s42, 1')
    a.I('s_cselect_b32 s56, 1.0, 0')
    a.I('s_cmp_eq_u32 s42, 4')
    a.I('s_cselect_b32 s56, 1.0, s56')
    a.I('s_cmp_eq_u32 s42, 0')
    a.I(f's_cselect_b32 s57, {lit(2048.0)}, 1.0')
    a.I('s_lshl_b32 s43, s41, 5')
    vj, vp = va(), va()
    a.I(f'v_add_u32 {vr(vj)}, s43, {vr(vcol)}')
    a.I(f'v_and_b32 {vr(vp)}, 0xffffffc0, {vr(vj)}')
    a.I(f'v_and_b32 {vr(vl)}, 15, {vr(vj)}')
    a.I(f'v_lshl_add_u32 {vr(vp)}, {vr(vl)}, 2, {vr(vp)}')
    a.I(f'v_bfe_u32 {vr(vl)}, {vr(vj)}, 4, 2')
    a.I(f'v_add_lshl_u32 {vr(vp)}, {vr(vp)}, {vr(vl)}, 2')
    a.I(f'v_lshlrev_b32 {vr(vj)}, 1, {vr(vj)}')
    a.I(f'v_subrev_u32 {vr(vj)}, 2048, {vr(vj)}')
    for step in (8, 4, 2, 1):
        for p in range(step):
            a.I(f'v_add_f32 {vr(P + p)}, {vr(P + p)}, {vr(P + p + step)}')
    a.I(f'v_mov_b32 {vr(P + 1)}, {vr(P)}')
    a.I(f'v_permlane32_swap_b32 {vr(P)}, {vr(P + 1)}')
    a.I(f'v_add_f32 {vr(P)}, {vr(P)}, {vr(P + 1)}')
    a.I(f'v_cvt_pk_bf16_f32 {vr(P)}, {vr(P)}, {vr(P)}')
    a.I(f'v_lshlrev_b32 {vr(P)}, 16, {vr(P)}')
    a.I(f'v_add_f32 {vr(P)}, s56, {vr(P)}')
    a.I(f'v_cvt_pk_bf16_f32 {vr(P)}, {vr(P)}, {vr(P)}')
    a.I(f'v_lshlrev_b32 {vr(P + 1)}, 16, {vr(P)}')
    a.I(f'v_mul_f32 {vr(P + 1)}, s57, {vr(P + 1)}')
    a.I('s_mov_b32 exec_hi, 0')
    a.I(f'buffer_store_dword {vr(P + 1)}, {vr(vp)}, s[32:35], 0 offen{ST_A}')
    a.I(f'buffer_store_short {vr(P)}, {vr(vj)}, s[36:39], 0 offen{ST_A}')


def role_fill(a, base, n):
    va = Alloc(1, 256)
    per = 512 * 16
    rounds = -(-SENT_BYTES // (n * per))
    a.I(f's_sub_u32 s40, s2, {base}')
    a.I(f's_mul_i32 s41, s40, {rounds * per}')
    voff = va()
    a.I(f'v_lshlrev_b32 {vr(voff)}, 4, v0')
    F, Z, Wr = va(4), va(4), va(4)
    for d in range(4):
        a.I(f'v_mov_b32 {vr(F + d)}, -1')
        a.I(f'v_mov_b32 {vr(Z + d)}, 0')
    a.srd(24, S_WR, 1024)
    a.I(f'buffer_load_dwordx4 {vr(Wr, 4)}, {vr(voff)}, s[24:27], s41 offen')
    a.srd_off(28, S_WS, WS_SENT, SENT_BYTES)
    a.srd_off(32, S_WS, WS_ZERO, ZERO_BYTES)
    a.srd_off(36, S_WS, WS_TAB + 4096, 1024)
    a.I('s_lshl_b32 s43, s40, 13')
    a.I(f'buffer_store_dwordx4 {vr(Z, 4)}, {vr(voff)}, s[32:35], s43 offen{ST_A}')
    for r in range(rounds):
        a.I(f'buffer_store_dwordx4 {vr(F, 4)}, {vr(voff)}, s[28:31], s{41 if r == 0 else 42} offen{ST_A}')
        if r + 1 < rounds:
            a.I(f's_add_u32 s42, s41, {(r + 1) * per}')
    a.I(f'buffer_store_dwordx4 {vr(Wr, 4)}, {vr(voff)}, s[36:39], s41 offen{ST_A}')


def k1(a):
    name = 'k1_kernel'
    a.begin_kernel(name)
    a.I('s_cmp_ge_u32 s2, 256')
    a.I('s_cbranch_scc1 K1_END')
    load_args(a)
    a.stamp_init(0)
    a.I('s_cmp_ge_u32 s2, 128')
    a.I('s_cbranch_scc1 K1_MOD')
    role_k1_main(a)
    a.stamp_flush()
    a.I('s_endpgm')
    a.label('K1_MOD')
    a.I('s_cmp_ge_u32 s2, 224')
    a.I('s_cbranch_scc1 K1_FILL')
    role_mod(a, 128, 'K1_END')
    a.stamp_flush()
    a.I('s_endpgm')
    a.label('K1_FILL')
    a.nstamp = 1
    role_fill(a, 224, 32)
    a.stamp_flush()
    a.label('K1_END', end_only=True)
    a.I('s_endpgm')
    return name, (256, 512, 64 * K1_PITCH), a.desc(name)


def wave_sum(a, regs):
    for m in ('quad_perm:[1,0,3,2]', 'quad_perm:[2,3,0,1]', 'row_half_mirror', 'row_mirror'):
        for r in regs:
            a.I(f'v_add_f32_dpp {vr(r)}, {vr(r)}, {vr(r)} {m} {DPP_ALL}')
    for r in regs:
        a.I(f'v_add_f32_dpp {vr(r)}, {vr(r)}, {vr(r)} row_bcast:15 row_mask:0xa bank_mask:0xf')
    for r in regs:
        a.I(f'v_add_f32_dpp {vr(r)}, {vr(r)}, {vr(r)} row_bcast:31 row_mask:0xc bank_mask:0xf')


L_P = 0
L_TAB = 16384
L_Y = 24576
L_KEY = L_Y + 8 * 2304
L_ROW_END = L_KEY + 64


def role_rows(a):
    va = Alloc(1, 256)
    vi, vq, vw = lane_ids(a, va)
    voff, ve, vcw = va(), va(), va()
    a.I('s_lshr_b32 s41, s2, 5')
    a.I(f'v_lshl_add_u32 {vr(vcw)}, s41, 1, {vr(vw)}')
    a.I(f'v_and_b32 {vr(vcw)}, 7, {vr(vcw)}')
    a.I(f'v_lshlrev_b32 {vr(voff)}, 13, {vr(vq)}')
    a.I(f'v_lshl_add_u32 {vr(voff)}, {vr(vcw)}, 8, {vr(voff)}')
    a.I(f'v_lshl_add_u32 {vr(voff)}, {vr(vi)}, 4, {vr(voff)}')
    a.I(f'v_lshlrev_b32 {vr(ve)}, 6, {vr(vi)}')
    a.I(f'v_lshl_add_u32 {vr(ve)}, {vr(vq)}, 4, {vr(ve)}')
    a.I(f'v_readfirstlane_b32 s49, {vr(vw)}')
    a.I('s_and_b32 s40, s2, 31')
    a.I('s_lshl_b32 s42, s40, 16')
    a.I('s_add_u32 s43, s42, 4096')
    a.I('s_add_u32 s44, s42, 0x8000')
    a.I('s_add_u32 s45, s42, 0x9000')
    a.I('s_lshl_b32 s46, s49, 10')
    a.I(f's_add_u32 m0, s46, {L_TAB}')
    a.srd(24, S_WS, WS_END)
    a.srd_off(28, S_WS, WS_TAB, 5 * 1024)
    a.stamp()
    a.I(f'buffer_load_dwordx4 {vr(ve)}, s[28:31], s46 offen lds')
    L = [va(16), va(16)]
    for ks in range(2):
        for mm in range(4):
            a.I(f'buffer_load_dwordx4 {vr(L[ks] + 4 * mm, 4)}, {vr(voff)}, s[24:27], s{42 + 2 * ks + mm // 2} offen offset:{2048 * (mm % 2)}')
    vmo = va()
    a.I(f'v_and_b32 {vr(vmo)}, 0x1fff, {vr(voff)}')
    a.I(f's_mov_b32 s47, 0x{WS_MODF:x}')
    CA, SA = va(4), va(4)
    a.I(f'buffer_load_dwordx4 {vr(CA, 4)}, {vr(vmo)}, s[24:27], s47 offen offset:2048')
    a.I('s_cmp_eq_u32 s2, 0')
    a.I('s_cselect_b32 s48, s47, 0x7fff0000')
    a.I(f'buffer_load_dwordx4 {vr(SA, 4)}, {vr(vmo)}, s[24:27], s48 offen')
    a.I('s_cmp_eq_u32 s40, 0')
    a.I('s_cselect_b32 s50, 5, 6')
    a.I(f's_cselect_b32 s53, 0, {lit(-0.25)}')
    a.I('s_cselect_b64 s[54:55], -1, 0')
    a.I('s_lshl_b32 s51, s41, 3')
    a.I('s_lshl_b32 s51, s51, s50')
    a.I('s_add_u32 s51, s51, s40')
    a.I('s_lshl_b32 s52, s49, s50')
    a.I('s_add_u32 s52, s52, s51')
    a.I('s_sub_u32 s56, 2048, s52')
    a.I('s_lshl_b32 s57, s52, 10')
    a.I('s_lshl_b32 s58, s56, 10')
    a.srd(32, S_X, 2048 * 1024)
    XR = [va(4), va(4)]
    a.I(f'buffer_load_dwordx4 {vr(XR[0], 4)}, {vr(ve)}, s[32:35], s57 offen')
    a.I(f'buffer_load_dwordx4 {vr(XR[1], 4)}, {vr(ve)}, s[32:35], s58 offen')
    a.stamp()
    a.srd(36, S_OUT, 2048 * 1024)
    a.I('s_cmp_eq_u32 s2, 128')
    a.I('s_cselect_b32 s61, s49, 0')
    a.I('s_cmp_eq_u32 s61, 0')
    a.I('s_cselect_b32 s59, 0xfffffe00, 0')
    a.I('s_cselect_b32 s57, s57, 0x7fff0000')
    a.I('s_and_b32 s61, s52, 1023')
    a.I('s_cmp_lg_u32 s61, 0')
    a.I('s_cselect_b32 s60, s59, 0')
    a.I('s_cmp_lg_u32 s60, 0')
    a.I('s_cselect_b32 s58, s58, 0x7fff0000')
    t0, t1 = va(), va()
    vts, vb0, vb1, vmask = va(), va(), va(), va()
    a.I(f'v_lshrrev_b32 {vr(t0)}, 1, {vr(vi)}')
    a.I(f'v_lshlrev_b32 {vr(t0)}, s50, {vr(t0)}')
    a.I(f'v_add_u32 {vr(t0)}, s51, {vr(t0)}')
    a.I(f'v_cvt_f32_u32 {vr(vts)}, {vr(t0)}')
    a.I(f'v_mul_f32 {vr(vts)}, {lit(1 / 2048)}, {vr(vts)}')
    a.I(f'v_and_b32 {vr(t0)}, 1, {vr(vi)}')
    a.I(f'v_cvt_f32_u32 {vr(t0)}, {vr(t0)}')
    a.I(f'v_mul_f32 {vr(t0)}, {lit(0.25)}, {vr(t0)}')
    vqf = va()
    a.I(f'v_cvt_f32_u32 {vr(vqf)}, {vr(vq)}')
    a.I(f'v_mul_f32 {vr(vqf)}, 4.0, {vr(vqf)}')
    a.I(f'v_fma_f32 {vr(vb0)}, {vr(vts)}, {vr(vqf)}, {vr(t0)}')
    a.I(f'v_add_f32 {vr(vb1)}, s53, {vr(vb0)}')
    a.I(f'v_and_b32 {vr(t0)}, 2, {vr(vi)}')
    a.I(f'v_lshlrev_b32 {vr(t0)}, 3, {vr(t0)}')
    a.I(f'v_mov_b32 {vr(t1)}, 0xffff')
    a.I(f'v_lshlrev_b32 {vr(vmask)}, {vr(t0)}, {vr(t1)}')
    a.I(f'v_cndmask_b32_e64 {vr(vmask)}, -1, {vr(vmask)}, s[54:55]')
    AF = [va(4), va(4)]
    tmp = va(8)
    for ks in range(2):
        for j in range(8):
            a.I(f'v_fmamk_f32 {vr(tmp + j)}, {vr(vts)}, {lit(16 * ks + j // 2)}, {vr((vb0, vb1)[j % 2])}')
        for j in range(8):
            a.I(f'v_cos_f32 {vr(tmp + j)}, {vr(tmp + j)}')
        for j in range(4):
            a.I(f'v_cvt_pk_bf16_f32 {vr(AF[ks] + j)}, {vr(tmp + 2 * j)}, {vr(tmp + 2 * j + 1)}')
        for j in range(4):
            a.I(f'v_and_b32 {vr(AF[ks] + j)}, {vr(vmask)}, {vr(AF[ks] + j)}')
    vlw, vlr, vll = va(), va(), va()
    a.I(f'v_lshlrev_b32 {vr(vlw)}, 12, {vr(vq)}')
    a.I(f'v_lshrrev_b32 {vr(t0)}, 1, {vr(vcw)}')
    a.I(f'v_lshl_add_u32 {vr(vlw)}, {vr(t0)}, 8, {vr(vlw)}')
    a.I(f'v_lshl_add_u32 {vr(vlw)}, {vr(vi)}, 4, {vr(vlw)}')
    a.I(f'v_and_b32 {vr(t0)}, 1, {vr(vcw)}')
    a.I(f'v_lshl_add_u32 {vr(vlw)}, {vr(t0)}, 3, {vr(vlw)}')
    a.I(f'v_and_b32 {vr(vll)}, 63, v0')
    a.I(f'v_lshlrev_b32 {vr(vll)}, 4, {vr(vll)}')
    a.I(f'v_lshl_add_u32 {vr(vlr)}, {vr(vw)}, 11, {vr(vll)}')
    E1 = [va(), va()]
    a.I(f'v_lshrrev_b32 {vr(t0)}, 2, {vr(vi)}')
    a.I(f'v_and_b32 {vr(t1)}, 3, {vr(vi)}')
    a.I(f'v_lshl_add_u32 {vr(t0)}, {vr(t0)}, 3, {vr(t1)}')
    a.I(f'v_cvt_f32_u32 {vr(E1[0])}, {vr(t0)}')
    a.I(f'v_add_f32 {vr(E1[1])}, 4.0, {vr(E1[0])}')
    CT, ST, NT = [va(4), va(4)], [va(4), va(4)], [va(4), va(4)]
    tmp2 = va(8)
    for T in range(2):
        a.I(f'v_mul_f32 {vr(t0)}, {lit(1 / 32)}, {vr(E1[T])}')
        a.I(f'v_mul_f32 {vr(t1)}, {vr(vqf)}, {vr(t0)}')
        a.I(f'v_add_f32 {vr(t1)}, {vr(t1)}, {vr(t1)}')
        for j in range(8):
            a.I(f'v_fmamk_f32 {vr(tmp + j)}, {vr(t0)}, {lit(j)}, {vr(t1)}')
        for j in range(8):
            a.I(f'v_sin_f32 {vr(tmp2 + j)}, {vr(tmp + j)}')
            a.I(f'v_cos_f32 {vr(tmp + j)}, {vr(tmp + j)}')
        for j in range(4):
            a.I(f'v_cvt_pk_bf16_f32 {vr(CT[T] + j)}, {vr(tmp + 2 * j)}, {vr(tmp + 2 * j + 1)}')
            a.I(f'v_cvt_pk_bf16_f32 {vr(ST[T] + j)}, {vr(tmp2 + 2 * j)}, {vr(tmp2 + 2 * j + 1)}')
        for j in range(4):
            a.I(f'v_xor_b32 {vr(NT[T] + j)}, 0x80008000, {vr(ST[T] + j)}')
    WC, WS_ = [va(4), va(4)], [va(4), va(4)]
    for T in range(2):
        a.I(f'v_mul_f32 {vr(t0)}, {lit(1 / 512)}, {vr(E1[T])}')
        a.I(f'v_mul_f32 {vr(t1)}, {vr(vqf)}, {vr(t0)}')
        for r in range(4):
            a.I(f'v_fmamk_f32 {vr(tmp + r)}, {vr(t0)}, {lit(r)}, {vr(t1)}')
        for r in range(4):
            a.I(f'v_cos_f32 {vr(WC[T] + r)}, {vr(tmp + r)}')
            a.I(f'v_sin_f32 {vr(WS_[T] + r)}, {vr(tmp + r)}')
    FC = va(4)
    a.I(f'v_cvt_f32_u32 {vr(t0)}, {vr(vi)}')
    a.I(f'v_mul_f32 {vr(t0)}, {lit(1 / 16)}, {vr(t0)}')
    a.I(f'v_mul_f32 {vr(t1)}, {vr(vqf)}, {vr(t0)}')
    for r in range(4):
        a.I(f'v_fmamk_f32 {vr(tmp + r)}, {vr(t0)}, {lit(r)}, {vr(t1)}')
    for r in range(4):
        a.I(f'v_sin_f32 {vr(tmp + 4 + r)}, {vr(tmp + r)}')
        a.I(f'v_cos_f32 {vr(tmp + r)}, {vr(tmp + r)}')
    for j in range(4):
        a.I(f'v_cvt_pk_bf16_f32 {vr(FC + j)}, {vr(tmp + 2 * j)}, {vr(tmp + 2 * j + 1)}')
    vyw, vyr, vy0 = va(), va(), va()
    a.I(f's_mul_i32 s62, s49, 2304')
    a.I(f's_add_u32 s62, s62, {L_Y}')
    a.I(f'v_mul_u32_u24 {vr(vyw)}, 144, {vr(vi)}')
    a.I(f'v_lshl_add_u32 {vr(vyw)}, {vr(vq)}, 5, {vr(vyw)}')
    a.I(f's_add_u32 s63, s62, {144 * 15 + 96}')
    a.I(f'v_sub_u32 {vr(vyr)}, s63, {vr(vyw)}')
    a.I(f'v_add_u32 {vr(vyw)}, s62, {vr(vyw)}')
    a.I(f'v_lshl_add_u32 {vr(t0)}, {vr(vi)}, 2, {vr(vq)}')
    a.I(f'v_sub_u32 {vr(t0)}, 64, {vr(t0)}')
    a.I(f'v_and_b32 {vr(t0)}, 63, {vr(t0)}')
    a.I(f'v_lshrrev_b32 {vr(t1)}, 2, {vr(t0)}')
    a.I(f'v_lshlrev_b32 {vr(t1)}, 4, {vr(t1)}')
    a.I(f'v_lshl_add_u32 {vr(vy0)}, {vr(t0)}, 5, {vr(t1)}')
    a.I(f'v_add_u32 {vr(vy0)}, s62, {vr(vy0)}')
    a.I(f'v_cmp_eq_u32 vcc, 0, {vr(vq)}')
    a.stamp()
    D = [va(4) for c in range(4)]
    for ks in range(2):
        for x in range(4):
            for y in range(x + 1, 4):
                a.I(f'v_swap_b32 {vr(L[ks] + 4 * x + y)}, {vr(L[ks] + 4 * y + x)}')
        if ks == 1:
            a.stamp()
        for c in range(4):
            a.I(f'v_mfma_f32_16x16x32_bf16 {vr(D[c], 4)}, {vr(AF[ks], 4)}, {vr(L[ks] + 4 * c, 4)}, {"0" if ks == 0 else vr(D[c], 4)}')
    for c in range(4):
        a.I(f'v_cndmask_b32 {vr(SA + c)}, 0, {vr(SA + c)}, vcc')
    for c in range(4):
        a.I(f'v_fma_f32 {vr(D[c])}, {vr(D[c])}, {vr(CA + c)}, {vr(SA + c)}')
        for r in range(1, 4):
            a.I(f'v_mul_f32 {vr(D[c] + r)}, {vr(D[c] + r)}, {vr(CA + c)}')
    for r in range(4):
        a.I(f'v_cvt_pk_bf16_f32 {vr(tmp + 2 * r)}, {vr(D[0] + r)}, {vr(D[1] + r)}')
        a.I(f'v_cvt_pk_bf16_f32 {vr(tmp + 2 * r + 1)}, {vr(D[2] + r)}, {vr(D[3] + r)}')
        a.I(f'ds_write_b64 {vr(vlw)}, {vr(tmp + 2 * r, 2)} offset:{L_P + 1024 * r}')
    a.wait(lg=0)
    a.I('s_barrier')
    a.stamp()
    vb = Alloc(L[0], L[0] + 32)
    PR, PI = vb(4), vb(4)
    a.I(f'ds_read_b128 {vr(PR, 4)}, {vr(vlr)} offset:{L_P}')
    a.I(f'ds_read_b128 {vr(PI, 4)}, {vr(vlr)} offset:{L_P + 1024}')
    TB = [va(4) for k in range(5)]
    for k in (0, 2, 4, 1, 3):
        a.I(f'ds_read_b128 {vr(TB[k], 4)}, {vr(vll)} offset:{L_TAB + 1024 * k}')
    QR, QI = [vb(4), vb(4)], [vb(4), vb(4)]
    for T in range(2):
        a.I(f'v_mfma_f32_16x16x32_bf16 {vr(QR[T], 4)}, {vr(PR, 4)}, {vr(CT[T], 4)}, 0')
        a.I(f'v_mfma_f32_16x16x32_bf16 {vr(QI[T], 4)}, {vr(PR, 4)}, {vr(NT[T], 4)}, 0')
    for T in range(2):
        a.I(f'v_mfma_f32_16x16x32_bf16 {vr(QR[T], 4)}, {vr(PI, 4)}, {vr(ST[T], 4)}, {vr(QR[T], 4)}')
        a.I(f'v_mfma_f32_16x16x32_bf16 {vr(QI[T], 4)}, {vr(PI, 4)}, {vr(CT[T], 4)}, {vr(QI[T], 4)}')
    XF = [D[0], D[2]]
    unpack8(a, XF[0], XR[0])
    Y = va(8)
    QA = [vb(4), vb(4)]
    for T in range(2):
        tt = (tmp, tmp2)[T]
        for r in range(4):
            a.I(f'v_mul_f32 {vr(tt + r)}, {vr(QR[T] + r)}, {vr(WC[T] + r)}')
            a.I(f'v_mul_f32 {vr(tt + 4 + r)}, {vr(QI[T] + r)}, {vr(WC[T] + r)}')
        for r in range(4):
            a.I(f'v_fmac_f32 {vr(tt + r)}, {vr(QI[T] + r)}, {vr(WS_[T] + r)}')
            a.I(f'v_fma_f32 {vr(tt + 4 + r)}, -{vr(QR[T] + r)}, {vr(WS_[T] + r)}, {vr(tt + 4 + r)}')
        for j in range(4):
            a.I(f'v_cvt_pk_bf16_f32 {vr(QA[T] + j)}, {vr(tt + 2 * j)}, {vr(tt + 2 * j + 1)}')
        a.I(f'v_mfma_f32_16x16x32_bf16 {vr(Y + 4 * T, 4)}, {vr(QA[T], 4)}, {vr(FC, 4)}, 0')
    vc = Alloc(CT[0], CT[0] + 24)
    GA, CB, WF = vc(8), vc(8), vc(8)
    unpack8(a, GA, TB[0])
    a.I(f'ds_write_b128 {vr(vyw)}, {vr(Y, 4)}')
    a.I(f'ds_write_b128 {vr(vyw)}, {vr(Y + 4, 4)} offset:16')
    YM = tmp
    ym0 = t0
    a.I(f'ds_read_b128 {vr(YM, 4)}, {vr(vyr)}')
    a.I(f'ds_read_b128 {vr(YM + 4, 4)}, {vr(vyr)} offset:16')
    a.I(f'ds_read_b32 {vr(ym0)}, {vr(vy0)}')
    for d in range(8):
        a.I(f'v_fmac_f32 {vr(XF[0] + d)}, {vr(GA + d)}, {vr(Y + d)}')
    unpack8(a, CB, TB[2])
    unpack8(a, WF, TB[4])
    SBv, GB = WC[0], WS_[0]
    assert WC[1] == WC[0] + 4 and WS_[1] == WS_[0] + 4
    unpack8(a, SBv, TB[1])
    unpack8(a, XF[1], XR[1])
    s_cw, s_sw = va(), va()
    s_x, s_xx, s_xw = [va(), va()], [va(), va()], [va(), va()]
    for d in range(8):
        if d == 0:
            a.I(f'v_mul_f32 {vr(s_sw)}, {vr(SBv)}, {vr(WF)}')
        else:
            a.I(f'v_fmac_f32 {vr(s_sw)}, {vr(SBv + d)}, {vr(WF + d)}')
        a.I(f'v_mul_f32 {vr(WF + d)}, {vr(CB + d)}, {vr(WF + d)}')
    a.I(f'v_add_f32 {vr(s_cw)}, {vr(WF)}, {vr(WF + 1)}')
    for d in range(2, 8):
        a.I(f'v_add_f32 {vr(s_cw)}, {vr(s_cw)}, {vr(WF + d)}')

    def sums(k):
        X = XF[k]
        a.I(f'v_add_f32 {vr(s_x[k])}, {vr(X)}, {vr(X + 1)}')
        a.I(f'v_mul_f32 {vr(s_xx[k])}, {vr(X)}, {vr(X)}')
        a.I(f'v_mul_f32 {vr(s_xw[k])}, {vr(X)}, {vr(WF)}')
        for d in range(1, 8):
            if d >= 2:
                a.I(f'v_add_f32 {vr(s_x[k])}, {vr(s_x[k])}, {vr(X + d)}')
            a.I(f'v_fmac_f32 {vr(s_xx[k])}, {vr(X + d)}, {vr(X + d)}')
            a.I(f'v_fmac_f32 {vr(s_xw[k])}, {vr(X + d)}, {vr(WF + d)}')
    sums(0)
    for d in range(8):
        a.I(f'v_fmac_f32 {vr(XF[1] + d)}, {vr(GA + d)}, {vr(ym0 if d == 0 else YM + 8 - d)}')
    sums(1)
    wave_sum(a, [s_x[0], s_xx[0], s_xw[0], s_x[1], s_xx[1], s_xw[1], s_cw, s_sw])
    for k in range(2):
        a.I(f'v_mul_f32 {vr(s_x[k])}, {lit(1 / 512)}, {vr(s_x[k])}')
        a.I(f'v_mul_f32 {vr(s_xx[k])}, {lit(1 / 512)}, {vr(s_xx[k])}')
    for k in range(2):
        a.I(f'v_fma_f32 {vr(s_xx[k])}, -{vr(s_x[k])}, {vr(s_x[k])}, {vr(s_xx[k])}')
    for k in range(2):
        a.I(f'v_max_f32 {vr(s_xx[k])}, 0, {vr(s_xx[k])}')
    for k in range(2):
        a.I(f'v_add_f32 {vr(s_xx[k])}, {lit(1e-5)}, {vr(s_xx[k])}')
    for k in range(2):
        a.I(f'v_rsq_f32 {vr(s_xx[k])}, {vr(s_xx[k])}')
    for k in range(2):
        a.I(f'v_fma_f32 {vr(s_xw[k])}, -{vr(s_x[k])}, {vr(s_cw)}, {vr(s_xw[k])}')
    for k in range(2):
        a.I(f'v_mul_f32 {vr(s_x[k])}, {vr(s_x[k])}, {vr(s_xx[k])}')
        a.I(f'v_fma_f32 {vr(s_xw[k])}, {vr(s_xw[k])}, {vr(s_xx[k])}, {vr(s_sw)}')
    KY = va(2)
    a.I('s_lshl_b32 s64, s49, 1')
    a.I('s_add_u32 s64, s64, 1')
    a.I('s_add_u32 s65, s64, 1')
    for k in range(2):
        a.I(f'v_ashrrev_i32 {vr(KY + k)}, 31, {vr(s_xw[k])}')
    for k in range(2):
        a.I(f'v_or_b32 {vr(KY + k)}, 0x80000000, {vr(KY + k)}')
    for k in range(2):
        a.I(f'v_xor_b32 {vr(KY + k)}, {vr(KY + k)}, {vr(s_xw[k])}')
    for k in range(2):
        a.I(f'v_and_b32 {vr(KY + k)}, s{59 + k}, {vr(KY + k)}')
    for k in range(2):
        a.I(f'v_or_b32 {vr(KY + k)}, s{64 + k}, {vr(KY + k)}')
    a.I(f'v_lshlrev_b32 {vr(t1)}, 3, {vr(vw)}')
    a.I('s_mov_b32 exec_lo, 0')
    a.I('s_mov_b32 exec_hi, 0x80000000')
    a.I(f'ds_write_b64 {vr(t1)}, {vr(KY, 2)} offset:{L_KEY}')
    a.I('s_mov_b64 exec, -1')
    for k in range(2):
        a.I(f'v_readlane_b32 s{66 + k}, {vr(s_xx[k])}, 63')
        a.I(f'v_readlane_b32 s{44 + k}, {vr(s_x[k])}, 63')
        a.I(f'v_readlane_b32 s{46 + k}, {vr(KY + k)}, 63')
    a.I(f'v_lshlrev_b32 {vr(t1)}, 2, {vr(vi)}')
    a.stamp()
    a.wait(lg=0)
    a.I('s_barrier')
    kall = t0
    a.I(f'ds_read_b32 {vr(kall)}, {vr(t1)} offset:{L_KEY}')
    a.I('s_max_u32 s48, s46, s47')
    a.I('s_lshl_b32 s54, s2, 7')
    a.I(f's_add_u32 s54, s54, 0x{WS_KEY:x}')
    a.I('s_lshl_b32 s61, s2, 1')
    a.I('s_sub_u32 s61, 511, s61')
    a.I('s_sub_u32 s64, s61, 1')
    a.I('s_and_b32 s65, s48, 0xfffffe00')
    a.I('s_or_b32 s65, s65, s61')
    a.I(f'v_mov_b32 {vr(KY)}, s65')
    H = [Y, tmp2]
    HB = [QR[0], QR[1]]
    O = [QI[0], QI[1]]
    for k in range(2):
        a.I(f'v_mov_b32 {vr(s_x[k])}, s{44 + k}')
    a.I(f'v_cmp_gt_u32 vcc, s48, {vr(kall)}')
    for kk in range(2):
        a.I(f'v_cmp_lt_u32_e64 s[{40 + 2 * kk}:{41 + 2 * kk}], s{46 + kk}, {vr(kall)}')
    a.I(f'v_cndmask_b32 {vr(KY + 1)}, 0, {vr(kall)}, vcc')
    fill = [f'v_fma_f32 {vr(H[0] + d)}, {vr(XF[0] + d)}, s66, -{vr(s_x[0])}' for d in range(8)]
    for n, m in enumerate(('quad_perm:[1,0,3,2]', 'quad_perm:[2,3,0,1]', 'row_half_mirror', 'row_mirror')):
        a.I(fill[2 * n])
        a.I(fill[2 * n + 1])
        a.I(f'v_max_u32_dpp {vr(KY + 1)}, {vr(KY + 1)}, {vr(KY + 1)} {m} {DPP_ALL}')
    a.I('s_and_b32 s55, vcc_lo, 0xffff')
    a.I('s_bcnt1_i32_b32 s55, s55')
    a.I('s_cmp_eq_u32 s55, 15')
    a.I('s_cselect_b32 s54, s54, 0x7fff0000')
    a.I(f'v_and_b32 {vr(KY + 1)}, 0xfffffe00, {vr(KY + 1)}')
    a.I(f'v_or_b32 {vr(KY + 1)}, s64, {vr(KY + 1)}')
    a.I('s_mov_b64 exec, 1')
    a.I(f'buffer_store_dwordx2 {vr(KY, 2)}, off, s[24:27], s54 sc1')
    a.I('s_mov_b64 exec, -1')
    for kk in range(2):
        a.I(f's_and_b32 s{40 + 2 * kk}, s{40 + 2 * kk}, 0xffff')
        a.I(f's_bcnt1_i32_b32 s{40 + 2 * kk}, s{40 + 2 * kk}')
        a.I(f's_sub_u32 s{41 + 2 * kk}, s61, s{40 + 2 * kk}')
        a.I(f's_lshl_b32 s{50 + kk}, s{41 + 2 * kk}, 10')
        a.I(f's_add_u32 s{50 + kk}, s{50 + kk}, 0x{WS_H2 - 254 * 1024:x}')
        a.I(f's_lshl_b32 s{62 + kk}, s{41 + 2 * kk}, 2')
        a.I(f's_add_u32 s{62 + kk}, s{62 + kk}, 0x{WS_DONE - 254 * 4:x}')
        a.I(f's_cmp_lt_u32 s{40 + 2 * kk}, 2')
        a.I(f's_cselect_b32 s{50 + kk}, s{50 + kk}, 0x7fff0000')
        a.I(f's_cselect_b32 s{62 + kk}, s{62 + kk}, 0x7fff0000')
    for k in range(2):
        if k == 1:
            for d in range(8):
                a.I(f'v_fma_f32 {vr(H[k] + d)}, {vr(XF[k] + d)}, s{66 + k}, -{vr(s_x[k])}')
        for d in range(8):
            a.I(f'v_fma_f32 {vr(H[k] + d)}, {vr(H[k] + d)}, {vr(CB + d)}, {vr(SBv + d)}')
        for d in range(4):
            a.I(f'v_cvt_pk_bf16_f32 {vr(HB[k] + d)}, {vr(H[k] + 2 * d)}, {vr(H[k] + 2 * d + 1)}')
        a.I(f'buffer_store_dwordx4 {vr(HB[k], 4)}, {vr(ve)}, s[24:27], s{50 + k} offen sc1')
    unpack8(a, GB, TB[3])
    a.stamp()
    for k in range(2):
        for d in range(8):
            a.I(f'v_fmac_f32 {vr(XF[k] + d)}, {vr(GB + d)}, {vr(H[k] + d)}')
        for d in range(4):
            a.I(f'v_cvt_pk_bf16_f32 {vr(O[k] + d)}, {vr(XF[k] + 2 * d)}, {vr(XF[k] + 2 * d + 1)}')
        a.I(f'buffer_store_dwordx4 {vr(O[k], 4)}, {vr(ve)}, s[36:39], s{57 + k} offen sc1')
    a.I('s_add_u32 s52, s52, 1')
    a.I('s_add_u32 s56, s56, 1')
    a.I(f'v_mov_b32 {vr(KY)}, s52')
    a.I(f'v_mov_b32 {vr(KY + 1)}, s56')
    a.I('s_mov_b64 exec, 1')
    a.wait(vm=0)
    a.stamp()
    for kk in range(2):
        a.I(f'buffer_store_dword {vr(KY + kk)}, off, s[24:27], s{62 + kk} sc1')


def top2_merge(a, m1, m2, o1, o2, t):
    a.I(f'v_min_u32 {vr(t)}, {vr(m1)}, {vr(o1)}')
    a.I(f'v_max_u32 {vr(m1)}, {vr(m1)}, {vr(o1)}')
    a.I(f'v_max3_u32 {vr(m2)}, {vr(m2)}, {vr(o2)}, {vr(t)}')


F_W = 0
F_PART = 32768


def role_ffn(a, base, end_label):
    va = Alloc(1, 256)
    vi, vq, vw = lane_ids(a, va)
    a.I(f's_sub_u32 s40, s2, {base}')
    a.I('s_and_b32 s41, s40, 7')
    a.I('s_mul_i32 s41, s41, 14')
    a.I('s_lshr_b32 s42, s40, 3')
    a.I('s_add_u32 s41, s41, s42')
    a.I(f'v_readfirstlane_b32 s43, {vr(vw)}')
    a.srd(24, S_WS, WS_END)
    a.I('s_cmp_ge_u32 s43, 4')
    a.I('s_cbranch_scc1 FFN_DOWN')
    a.srd(28, S_GATE, 512 * 3584)
    a.srd(32, S_UP, 512 * 3584)
    voff, t0, t1 = va(), va(), va()
    a.I(f'v_bfe_u32 {vr(t0)}, v0, 1, 5')
    a.I(f'v_mul_u32_u24 {vr(voff)}, 3584, {vr(t0)}')
    a.I(f'v_and_b32 {vr(t0)}, 1, v0')
    a.I(f'v_lshl_add_u32 {vr(voff)}, {vr(t0)}, 4, {vr(voff)}')
    a.I(f's_mul_i32 s44, s43, {128 * 3584}')
    a.I('s_lshl_b32 s45, s41, 5')
    a.I('s_add_u32 s44, s44, s45')
    a.I('s_lshl_b32 s45, s43, 13')
    for ks in range(4):
        a.I(f's_add_u32 s46, s41, {ks}')
        a.I('s_and_b32 s46, s46, 3')
        a.I(f's_mul_i32 s47, s46, {32 * 3584}')
        a.I('s_add_u32 s47, s47, s44')
        a.I('s_lshl_b32 s46, s46, 10')
        a.I('s_add_u32 s46, s46, s45')
        for mat in range(2):
            a.I(f's_add_u32 m0, s46, {F_W + 4096 * mat}')
            a.I(f'buffer_load_dwordx4 {vr(voff)}, s[{28 + 4 * mat}:{31 + 4 * mat}], s47 offen lds')
    a.stamp(1)
    vlr, vk, vxo = va(), va(), va()
    a.I(f'v_lshlrev_b32 {vr(vlr)}, 13, {vr(vw)}')
    a.I(f'v_lshl_add_u32 {vr(vlr)}, {vr(vq)}, 8, {vr(vlr)}')
    a.I(f'v_lshl_add_u32 {vr(vlr)}, {vr(vi)}, 3, {vr(vlr)}')
    a.I(f'v_and_b32 {vr(vk)}, 63, v0')
    a.I(f'v_lshlrev_b32 {vr(vk)}, 4, {vr(vk)}')
    a.I(f'v_lshlrev_b32 {vr(vxo)}, 8, {vr(vw)}')
    a.I(f'v_lshl_add_u32 {vr(vxo)}, {vr(vq)}, 4, {vr(vxo)}')
    vlw = va()
    a.I(f'v_lshlrev_b32 {vr(vlw)}, 8, {vr(vw)}')
    a.I(f'v_lshl_add_u32 {vr(vlw)}, {vr(vi)}, 6, {vr(vlw)}')
    a.I(f'v_lshl_add_u32 {vr(vlw)}, {vr(vq)}, 4, {vr(vlw)}')
    a.I(f's_mov_b32 s46, 0x{WS_KEY:x}')
    a.I(f's_mov_b32 s47, 0x{WS_H2 - 254 * 1024:x}')
    a.I(f's_mov_b32 s48, {SPIN_MAX}')
    a.I('s_mov_b32 s50, 0xaaaaaaaa')
    a.I('s_mov_b32 s51, 0xaaaaaaaa')
    a.wait(vm=0)
    a.stamp()
    WF = [[va(4) for ks in range(4)] for mat in range(2)]
    for ks in range(4):
        for mat in range(2):
            for half in range(2):
                a.I(f'ds_read_b64_tr_b16 {vr(WF[mat][ks] + 2 * half, 2)}, {vr(vlr)} offset:{F_W + 4096 * mat + 1024 * ks + 128 * half}')
    a.full_wait()
    KY, KX = va(4), va(2)
    vkl = va()
    a.I(f'v_lshlrev_b32 {vr(vkl)}, 3, {vr(vk)}')
    a.I(f's_mov_b32 s52, 0x{WS_KEY + 8192:x}')
    a.I(f's_mov_b32 s53, 0x{WS_KEY + 16384:x}')
    a.label('FFN_POLL_KEYS')
    a.I(f'buffer_load_dwordx2 {vr(KY, 2)}, {vr(vkl)}, s[24:27], s46 offen sc1')
    a.I(f'buffer_load_dwordx2 {vr(KY + 2, 2)}, {vr(vkl)}, s[24:27], s52 offen sc1')
    a.I(f'buffer_load_dword {vr(KX)}, off, s[24:27], s53 sc1')
    a.I('s_sub_u32 s48, s48, 1')
    a.I(f'v_min3_u32 {vr(t0)}, {vr(KY)}, {vr(KY + 1)}, {vr(KY + 2)}')
    a.I(f'v_min3_u32 {vr(t0)}, {vr(t0)}, {vr(KY + 3)}, {vr(KX)}')
    a.I(f'v_cmp_eq_u32 vcc, 0, {vr(t0)}')
    a.I('s_cselect_b64 vcc, 0, vcc')
    a.I('s_and_b64 exec, exec, vcc')
    a.I('s_cbranch_scc0 FFN_KEYS_OK')
    if POLL_SLEEP:
        a.I(f's_sleep {POLL_SLEEP}')
    a.I('s_branch FFN_POLL_KEYS')
    a.label('FFN_KEYS_OK')
    a.I('s_mov_b64 exec, -1')
    a.I(f's_mov_b32 s48, {SPIN_MAX}')
    a.stamp()
    m1, m2, o1, o2 = KY, KY + 1, KY + 2, KY + 3
    top2_merge(a, m1, m2, o1, o2, t1)
    for m in ('quad_perm:[1,0,3,2]', 'quad_perm:[2,3,0,1]', 'row_half_mirror', 'row_mirror'):
        a.I(f'v_mov_b32_dpp {vr(o1)}, {vr(m1)} {m} {DPP_ALL}')
        a.I(f'v_mov_b32_dpp {vr(o2)}, {vr(m2)} {m} {DPP_ALL}')
        top2_merge(a, m1, m2, o1, o2, t1)
    for sw in ('v_permlane16_swap_b32', 'v_permlane32_swap_b32'):
        a.I(f'v_mov_b32 {vr(o1)}, {vr(m1)}')
        a.I(f'v_mov_b32 {vr(o2)}, {vr(m2)}')
        a.I(f'{sw} {vr(m1)}, {vr(o1)}')
        a.I(f'{sw} {vr(m2)}, {vr(o2)}')
        top2_merge(a, m1, m2, o1, o2, t1)
    a.I(f'v_med3_u32 {vr(m2)}, {vr(m1)}, {vr(m2)}, {vr(KX)}')
    a.I(f'v_max_u32 {vr(m1)}, {vr(m1)}, {vr(KX)}')
    a.I(f'v_cndmask_b32_e64 {vr(o1)}, {vr(m1)}, {vr(m2)}, s[50:51]')
    a.I(f'v_and_b32 {vr(o1)}, 0x1ff, {vr(o1)}')
    a.I(f'v_lshl_add_u32 {vr(vxo)}, {vr(o1)}, 10, {vr(vxo)}')
    XB = va(16)
    D = [va(4), va(4)]
    a.stamp()
    a.full_wait()
    a.label('FFN_POLL_X')
    for ks in range(4):
        a.I(f'buffer_load_dwordx4 {vr(XB + 4 * ks, 4)}, {vr(vxo)}, s[24:27], s47 offen offset:{64 * ks} sc1')
    a.I('s_sub_u32 s48, s48, 1')
    a.I('s_cselect_b32 s49, 0, 1')
    for ks in range(4):
        for mat in range(2):
            a.I(f'v_mfma_f32_16x16x32_bf16 {vr(D[mat], 4)}, {vr(WF[mat][ks], 4)}, {vr(XB + 4 * ks, 4)}, {"0" if ks == 0 else vr(D[mat], 4)}')
        b = XB + 4 * ks
        if ks == 0:
            a.I(f'v_max3_u32 {vr(t0)}, {vr(b)}, {vr(b + 1)}, {vr(b + 2)}')
            a.I(f'v_max_u32 {vr(t0)}, {vr(t0)}, {vr(b + 3)}')
        else:
            a.I(f'v_max3_u32 {vr(t0)}, {vr(t0)}, {vr(b)}, {vr(b + 1)}')
            a.I(f'v_max3_u32 {vr(t0)}, {vr(t0)}, {vr(b + 2)}, {vr(b + 3)}')
    a.I(f'v_cmp_eq_u32 vcc, -1, {vr(t0)}')
    a.I('s_cmp_eq_u32 s49, 0')
    a.I('s_cselect_b64 vcc, 0, vcc')
    a.I('s_cmp_lg_u64 vcc, 0')
    a.I('s_cbranch_scc1 FFN_POLL_X')
    a.I(f's_mov_b32 s48, {SPIN_MAX}')
    a.I('s_mov_b32 exec_lo, 0x00030003')
    a.I('s_mov_b32 exec_hi, 0x00030003')
    for mat in range(2):
        a.I(f'ds_write_b128 {vr(vlw)}, {vr(D[mat], 4)} offset:{F_PART + 128 * mat}')
    a.I('s_mov_b64 exec, -1')
    a.stamp()
    a.wait(lg=0)
    a.I('s_barrier')
    a.I('s_lshl_b32 s52, s43, 6')
    a.I('s_add_u32 s52, s52, s40')
    a.I('s_cmp_ge_u32 s52, 64')
    a.I(f's_cbranch_scc1 {end_label}')
    a.srd(36, S_OUT, 2048 * 1024)
    a.I('s_cmp_ge_u32 s40, 32')
    a.I('s_cselect_b64 s[52:53], -1, 0')
    key, vd, dn = va(), va(), va()
    a.I(f'v_cndmask_b32_e64 {vr(key)}, {vr(m1)}, {vr(m2)}, s[52:53]')
    a.I(f'v_and_b32 {vr(vd)}, 0x1ff, {vr(key)}')
    a.I(f'v_lshlrev_b32 {vr(vd)}, 2, {vr(vd)}')
    a.I(f's_mov_b32 s54, 0x{WS_DONE - 254 * 4:x}')
    a.I('s_and_b32 s55, s40, 31')
    a.I('s_lshl_b32 s55, s55, 5')
    a.I(f's_add_u32 s56, s55, 0x{WS_TAB + 3072:x}')
    vc8 = va()
    a.I(f'v_and_b32 {vr(vc8)}, 3, v0')
    a.I(f'v_lshlrev_b32 {vr(vc8)}, 3, {vr(vc8)}')
    GBp, OLD = va(2), va(2)
    a.label('FFN_POLL_DONE')
    a.I(f'buffer_load_dword {vr(dn)}, {vr(vd)}, s[24:27], s54 offen sc1')
    a.I(f'buffer_load_dwordx2 {vr(GBp, 2)}, {vr(vc8)}, s[24:27], s56 offen')
    a.I('s_sub_u32 s48, s48, 1')
    a.wait(vm=0)
    a.I(f'v_cmp_eq_u32 vcc, 0, {vr(dn)}')
    a.I('s_cselect_b64 vcc, 0, vcc')
    a.I('s_cmp_lg_u64 vcc, 0')
    a.I('s_cbranch_scc1 FFN_POLL_DONE')
    a.I(f's_mov_b32 s48, {SPIN_MAX}')
    vo = va()
    a.I(f'v_subrev_u32 {vr(vo)}, 1, {vr(dn)}')
    a.I(f'v_lshl_add_u32 {vr(vo)}, {vr(vo)}, 10, {vr(vc8)}')
    sig = va()
    a.I(f'v_ashrrev_i32 {vr(sig)}, 31, {vr(key)}')
    a.I(f'v_not_b32 {vr(sig)}, {vr(sig)}')
    a.I(f'v_or_b32 {vr(sig)}, 0x80000000, {vr(sig)}')
    a.I(f'v_xor_b32 {vr(sig)}, {vr(sig)}, {vr(key)}')
    a.I(f'v_mul_f32 {vr(sig)}, {lit(-LOG2E)}, {vr(sig)}')
    a.I(f'v_exp_f32 {vr(sig)}, {vr(sig)}')
    a.I(f'v_add_f32 {vr(sig)}, 1.0, {vr(sig)}')
    a.I(f'v_rcp_f32 {vr(sig)}, {vr(sig)}')
    G4 = va(4)
    for d in range(2):
        a.I(f'v_lshlrev_b32 {vr(G4 + 2 * d)}, 16, {vr(GBp + d)}')
        a.I(f'v_and_b32 {vr(G4 + 2 * d + 1)}, 0xffff0000, {vr(GBp + d)}')
    for d in range(4):
        a.I(f'v_mul_f32 {vr(G4 + d)}, {vr(G4 + d)}, {vr(sig)}')
    a.I(f's_mul_i32 s57, s40, {NF * 64}')
    a.I(f's_add_u32 s57, s57, 0x{WS_PART:x}')
    a.I('s_add_u32 s58, s57, 4096')
    NL = NF // 16
    P = va(4 * NL)
    a.stamp()
    a.full_wait()
    a.label('FFN_POLL_PART')
    for jj in range(NL):
        a.I(f'buffer_load_dwordx4 {vr(P + 4 * jj, 4)}, {vr(vk)}, s[24:27], s{57 + jj // 4} offen offset:{1024 * (jj % 4)} sc1')
    a.I(f'buffer_load_dwordx2 {vr(OLD, 2)}, {vr(vo)}, s[36:39], s55 offen sc1')
    a.I('s_sub_u32 s48, s48, 1')
    for jj in range(NL):
        b = P + 4 * jj
        if jj == 0:
            a.I(f'v_max3_u32 {vr(t0)}, {vr(b)}, {vr(b + 1)}, {vr(b + 2)}')
            a.I(f'v_max_u32 {vr(t0)}, {vr(t0)}, {vr(b + 3)}')
        else:
            a.I(f'v_max3_u32 {vr(t0)}, {vr(t0)}, {vr(b)}, {vr(b + 1)}')
            a.I(f'v_max3_u32 {vr(t0)}, {vr(t0)}, {vr(b + 2)}, {vr(b + 3)}')
            for d in range(4):
                a.I(f'v_add_f32 {vr(P + d)}, {vr(P + d)}, {vr(b + d)}')
    a.wait(vm=0)
    a.I(f'v_cmp_eq_u32 vcc, -1, {vr(t0)}')
    a.I('s_cselect_b64 vcc, 0, vcc')
    a.I('s_cmp_lg_u64 vcc, 0')
    a.I('s_cbranch_scc1 FFN_POLL_PART')
    a.stamp()
    for ror in (4, 8):
        for d in range(4):
            a.I(f'v_add_f32_dpp {vr(P + d)}, {vr(P + d)}, {vr(P + d)} row_ror:{ror} {DPP_ALL}')
    for sw in ('v_permlane16_swap_b32', 'v_permlane32_swap_b32'):
        for d in range(4):
            a.I(f'v_mov_b32 {vr(P + 4 + d)}, {vr(P + d)}')
        for d in range(4):
            a.I(f'{sw} {vr(P + d)}, {vr(P + 4 + d)}')
        for d in range(4):
            a.I(f'v_add_f32 {vr(P + d)}, {vr(P + d)}, {vr(P + 4 + d)}')
    for d in range(2):
        a.I(f'v_lshlrev_b32 {vr(P + 8 + 2 * d)}, 16, {vr(OLD + d)}')
        a.I(f'v_and_b32 {vr(P + 9 + 2 * d)}, 0xffff0000, {vr(OLD + d)}')
    for d in range(4):
        a.I(f'v_fmac_f32 {vr(P + 8 + d)}, {vr(P + d)}, {vr(G4 + d)}')
    for d in range(2):
        a.I(f'v_cvt_pk_bf16_f32 {vr(OLD + d)}, {vr(P + 8 + 2 * d)}, {vr(P + 9 + 2 * d)}')
    a.I('s_mov_b64 exec, 15')
    a.I(f'buffer_store_dwordx2 {vr(OLD, 2)}, {vr(vo)}, s[36:39], s55 offen sc1')
    a.stamp_flush()
    a.I('s_endpgm')

    a.label('FFN_DOWN')
    a.nstamp = 1
    va = Alloc(vw + 1, 256)
    a.srd(28, S_DOWN, 1792 * 1024)
    vod, t0, t1 = va(), va(), va()
    a.I(f'v_and_b32 {vr(t0)}, 3, {vr(vw)}')
    a.I(f'v_lshlrev_b32 {vr(vod)}, 12, {vr(vq)}')
    a.I(f'v_lshl_add_u32 {vr(vod)}, {vr(t0)}, 8, {vr(vod)}')
    a.I(f'v_lshl_add_u32 {vr(vod)}, {vr(vi)}, 4, {vr(vod)}')
    a.I('s_lshl_b32 s44, s41, 14')
    WD = va(16)
    for j in range(4):
        a.I(f'buffer_load_dwordx4 {vr(WD + 4 * j, 4)}, {vr(vod)}, s[28:31], s44 offen offset:{1024 * j}')
    a.I('s_mov_b32 s52, 0x05040100')
    a.I('s_mov_b32 s53, 0x07060302')
    vl, vst = va(), va()
    a.I(f'v_and_b32 {vr(t1)}, 1, {vr(vi)}')
    a.I(f'v_lshlrev_b32 {vr(vl)}, 6, {vr(t1)}')
    a.I(f'v_lshl_add_u32 {vr(vl)}, {vr(vq)}, 4, {vr(vl)}')
    a.I(f'v_lshlrev_b32 {vr(vst)}, 5, {vr(vq)}')
    a.I(f'v_lshl_add_u32 {vr(vst)}, {vr(t0)}, 3, {vr(vst)}')
    a.I(f'v_lshrrev_b32 {vr(t0)}, 1, {vr(vi)}')
    a.I(f'v_add_u32 {vr(vst)}, {vr(vst)}, {vr(t0)}')
    a.I(f'v_mul_u32_u24 {vr(vst)}, {NF * 64}, {vr(vst)}')
    a.I(f'v_lshl_add_u32 {vr(vst)}, {vr(t1)}, 5, {vr(vst)}')
    a.I('s_lshl_b32 s45, s40, 6')
    a.I(f's_add_u32 s45, s45, 0x{WS_PART:x}')
    a.I('s_mov_b32 s46, 0xffff0000')
    a.I('s_mov_b32 s47, 0')
    BD = va(16)
    for c in range(8):
        for m in range(2):
            a.I(f'v_perm_b32 {vr(BD + 2 * c + m)}, {vr(WD + 4 * (2 * m + 1) + c // 2)}, {vr(WD + 4 * (2 * m) + c // 2)}, s{52 + c % 2}')
    a.stamp()
    a.I('s_barrier')
    a.stamp()
    R = va(32)
    for w in range(4):
        for mat in range(2):
            a.I(f'ds_read_b128 {vr(R + 8 * w + 4 * mat, 4)}, {vr(vl)} offset:{F_PART + 256 * w + 128 * mat}')
    for d in range(8):
        a.I(f'v_add_f32 {vr(R + d)}, {vr(R + d)}, {vr(R + 8 + d)}')
    for d in range(8):
        a.I(f'v_add_f32 {vr(R + 16 + d)}, {vr(R + 16 + d)}, {vr(R + 24 + d)}')
    for d in range(8):
        a.I(f'v_add_f32 {vr(R + d)}, {vr(R + d)}, {vr(R + 16 + d)}')
    E = R + 8
    for d in range(4):
        a.I(f'v_mul_f32 {vr(E + d)}, {lit(-LOG2E)}, {vr(R + d)}')
    for d in range(4):
        a.I(f'v_exp_f32 {vr(E + d)}, {vr(E + d)}')
    for d in range(4):
        a.I(f'v_mul_f32 {vr(R + d)}, {vr(R + d)}, {vr(R + 4 + d)}')
    for d in range(4):
        a.I(f'v_add_f32 {vr(E + d)}, 1.0, {vr(E + d)}')
    for d in range(4):
        a.I(f'v_rcp_f32 {vr(E + d)}, {vr(E + d)}')
    for d in range(4):
        a.I(f'v_mul_f32 {vr(R + d)}, {vr(R + d)}, {vr(E + d)}')
    XA = va(2)
    for d in range(2):
        a.I(f'v_cvt_pk_bf16_f32 {vr(XA + d)}, {vr(R + 2 * d)}, {vr(R + 2 * d + 1)}')
    D = va(32)
    for c in range(8):
        a.I(f'v_mfma_f32_16x16x16_bf16 {vr(D + 4 * c, 4)}, {vr(XA, 2)}, {vr(BD + 2 * c, 2)}, 0')
    O = R + 16
    for c in range(8):
        a.I(f'v_cndmask_b32_e64 {vr(O + c)}, {vr(D + 4 * c)}, {vr(D + 4 * c + 1)}, s[46:47]')
        if c % 4 == 3:
            a.I('s_mov_b32 exec_hi, 0')
            a.I(f'buffer_store_dwordx4 {vr(O + c - 3, 4)}, {vr(vst)}, s[24:27], s45 offen offset:{4 * (c - 3)} sc1')


def k2(a):
    name = 'k2_kernel'
    a.begin_kernel(name)
    a.I(f's_cmp_ge_u32 s2, {NMAIN + NF}')
    a.I('s_cbranch_scc1 K2_END')
    load_args(a)
    a.stamp_init(1)
    a.I(f's_cmp_ge_u32 s2, {NMAIN}')
    a.I('s_cbranch_scc1 K2_FFN')
    role_rows(a)
    a.stamp_flush(drain=False)
    a.I('s_endpgm')
    a.label('K2_FFN')
    a.nstamp = 1
    role_ffn(a, NMAIN, 'K2_END')
    a.stamp_flush()
    a.label('K2_END', end_only=True)
    a.I('s_endpgm')
    return name, (NMAIN + NF, 512, 44 * 1024), a.desc(name)


def build(path, stamps=False, st_a='', sleep=2):
    global ST_A, POLL_SLEEP
    ST_A = st_a
    POLL_SLEEP = sleep
    a = Asm()
    a.stamps_on = stamps
    ks = [k1(a), k2(a)]
    head = ['; generated by work/gen2.py']
    for name, (g, b, lds), _ in ks:
        head.append(f'; @launch kernel={name} grid=({g},1,1) block=({b},1,1) lds={lds}')
    head += ['.amdgcn_target "amdgcn-amd-amdhsa--gfx950"', '.text']
    tail = ['.section .rodata,"a"'] + [d for _, _, d in ks]
    open(path, 'w').write('\n'.join(head + a.out + tail) + '\n')


if __name__ == '__main__':
    out = sys.argv[1] if len(sys.argv) > 1 else f'cdna_kernels/{NAME}.s'
    opts = sys.argv[2:]
    sl = [int(o[6:]) for o in opts if o.startswith('sleep=')]
    build(out, 'stamps' in opts, ' sc1' if 'k1sc1' in opts else '', sl[0] if sl else 2)
```

```python
import sys
from asmlib import *

def saddr(k, wg, wave, idx):
    return Asm.STAMP_BASE + k * 512 * 16 * 64 + (wg * 16 + wave) * 64 + idx * 4

def make(src, dst, A, B, mult=1):
    a = Asm()
    a.begin_kernel('probe_kernel')
    a.I('s_cmp_ge_u32 s2, 1'); a.I('s_cbranch_scc1 PROBE_END')
    a.I('s_load_dwordx2 s[4:5], s[0:1], 112')
    a.I('s_memrealtime s[10:11]')
    a.I('s_mov_b32 s6, 0x2000000'); a.I('s_mov_b32 s7, 0x20000')
    a.I(f's_mov_b32 s8, 0x{saddr(*(A or (0,1,0,0))):x}')
    a.I(f's_mov_b32 s9, 0x{saddr(*(B if isinstance(B, tuple) else (0,1,0,0))):x}')
    a.I('buffer_load_dword v1, off, s[4:7], s8')
    a.I('buffer_load_dword v2, off, s[4:7], s9')
    a.I('v_readfirstlane_b32 s12, v1')
    a.I('v_readfirstlane_b32 s13, v2')
    if B == 'now':
        a.I('s_mov_b32 s13, s10')
    a.I('s_sub_u32 s14, s13, s12')
    a.I(f's_mul_i32 s14, s14, {mult}')
    a.I('s_min_u32 s14, s14, 20000')
    a.I('s_memrealtime s[10:11]')
    a.full_wait()
    a.label('PROBE_LOOP')
    a.I('s_memrealtime s[16:17]')
    a.I('s_sub_u32 s18, s16, s10')
    a.I('s_cmp_lt_u32 s18, s14')
    a.I('s_cbranch_scc1 PROBE_LOOP')
    a.label('PROBE_END', end_only=True)
    a.I('s_endpgm')
    s = open(src).read().split('\n')
    n = max(i for i, l in enumerate(s) if l.startswith('; @launch'))
    s.insert(n + 1, '; @launch kernel=probe_kernel grid=(1,1,1) block=(64,1,1) lds=0')
    txt = '\n'.join(s).replace('.section .rodata,"a"', '\n'.join(a.out) + '\n.section .rodata,"a"') + a.desc('probe_kernel') + '\n'
    open(dst, 'w').write(txt)

if __name__ == '__main__':
    V = 'variants/'
    src = V + sys.argv[1]
    make(src, V + 'p0.s', None, None)
    make(src, V + 'p1.s', (0, 1, 0, 0), 'now')
    make(src, V + 'p2.s', (0, 1, 0, 0), (1, 1, 0, 0))
    make(src, V + 'p3.s', (0, 1, 0, 0), (0, 1, 0, 7))
    make(src, V + 'p4.s', (1, 1, 0, 0), (1, 1, 0, 7))
    make(src, V + 'p5.s', (1, 1, 0, 0), (1, 130, 0, 3))
```

```python
import sys
from asmlib import *

def saddr(k, wg, wave, idx):
    return Asm.STAMP_BASE + k * 512 * 16 * 64 + (wg * 16 + wave) * 64 + idx * 4

def make(src, dst, A, B, mult=1):
    a = Asm()
    a.begin_kernel('probe_kernel')
    a.I('s_cmp_ge_u32 s2, 1'); a.I('s_cbranch_scc1 PROBE_END')
    a.I('s_load_dwordx2 s[4:5], s[0:1], 112')
    a.I('s_memrealtime s[10:11]')
    a.I('s_mov_b32 s6, 0x2000000'); a.I('s_mov_b32 s7, 0x20000')
    a.I(f's_mov_b32 s8, 0x{saddr(*(A or (0,1,0,0))):x}')
    a.I(f's_mov_b32 s9, 0x{saddr(*(B if isinstance(B, tuple) else (0,1,0,0))):x}')
    a.I('buffer_load_dword v1, off, s[4:7], s8')
    a.I('buffer_load_dword v2, off, s[4:7], s9')
    a.I('v_readfirstlane_b32 s12, v1')
    a.I('v_readfirstlane_b32 s13, v2')
    if B == 'now':
        a.I('s_mov_b32 s13, s10')
    a.I('s_sub_u32 s14, s13, s12')
    a.I(f's_mul_i32 s14, s14, {mult}')
    a.I('s_add_u32 s14, s14, 300')
    a.I('s_min_u32 s14, s14, 20000')
    a.I('s_memrealtime s[10:11]')
    a.full_wait()
    a.label('PROBE_LOOP')
    a.I('s_memrealtime s[16:17]')
    a.I('s_sub_u32 s18, s16, s10')
    a.I('s_cmp_lt_u32 s18, s14')
    a.I('s_cbranch_scc1 PROBE_LOOP')
    a.label('PROBE_END', end_only=True)
    a.I('s_endpgm')
    s = open(src).read().split('\n')
    n = max(i for i, l in enumerate(s) if l.startswith('; @launch'))
    s.insert(n + 1, '; @launch kernel=probe_kernel grid=(1,1,1) block=(64,1,1) lds=0')
    txt = '\n'.join(s).replace('.section .rodata,"a"', '\n'.join(a.out) + '\n.section .rodata,"a"') + a.desc('probe_kernel') + '\n'
    open(dst, 'w').write(txt)

if __name__ == '__main__':
    V = 'variants/'
    src = V + sys.argv[1]
    make(src, V + 'p0.s', None, None)
    for n, spec in enumerate(sys.argv[2:]):
        A, B = spec.split('-')
        A = tuple(map(int, A.split(','))); B = 'now' if B == 'now' else tuple(map(int, B.split(',')))
        make(src, V + f'p{n + 1}.s', A, B)
```

```python
import sys
import math
from asmlib import *

NAME = 'adaLN_cond__spectral_fnet__moe_arch_mod__prompt'

NF = 112
NMAIN = 129
WS_A = 0x000000
WS_MODF = 0x200000
WS_TAB = 0x201000
WS_ZERO = 0x204000
WS_KEY = WS_ZERO
WS_DONE = WS_ZERO + 0x4800
ZERO_BYTES = 0x5000
WS_SENT = 0x210000
WS_H2 = WS_SENT
WS_PART = WS_SENT + 0x48000
SENT_BYTES = 0x48000 + 64 * NF * 64
WS_FLAG = 0x300000
NFILL = 17
FLAG_M = 1024
FLAG_F = 1024 + 96
WS_EPOCH = WS_FLAG + 0x28000
WS_END = WS_EPOCH + 128
assert WS_SENT + SENT_BYTES <= WS_FLAG
TAG_LO, TAG_HI = 0x9e3779b9, 0x7f4a7c15
S_TAG = 68
LDS2 = 18432

DPP_ALL = 'row_mask:0xf bank_mask:0xf'
LOG2E = 1.4426950408889634
SPIN_MAX = 200000

S_X, S_WR, S_GATE, S_UP, S_DOWN, S_C, S_WMOD, S_OUT, S_DBG, S_WS = 4, 8, 10, 12, 14, 16, 18, 20, 22, 6


def load_args(a):
    a.I('s_load_dwordx2 s[4:5], s[0:1], 0')
    a.I('s_load_dwordx2 s[6:7], s[0:1], 112')
    a.I('s_load_dwordx16 s[8:23], s[0:1], 48')


def load_tag(a):
    a.I(f's_mov_b32 s3, 0x{WS_EPOCH:x}')
    a.I(f's_load_dwordx2 s[{S_TAG}:{S_TAG + 1}], s[6:7], s3')


def make_tag(a):
    a.I(f's_add_u32 s{S_TAG}, s{S_TAG}, 0x{TAG_LO:x}')
    a.I(f's_addc_u32 s{S_TAG + 1}, s{S_TAG + 1}, 0x{TAG_HI:x}')


def put_flag(a, srd, soff, v2):
    a.I(f'v_mov_b32 {vr(v2)}, s{S_TAG}')
    a.I(f'v_mov_b32 {vr(v2 + 1)}, s{S_TAG + 1}')
    a.I('s_mov_b64 exec, 1')
    a.wait(vm=0)
    a.I(f'buffer_store_dwordx2 {vr(v2, 2)}, off, {sr(srd, 4)}, s{soff} sc1')
    a.I('s_mov_b64 exec, -1')


def poll_flags(a, name, srd, vaddr, v2, cnt):
    a.I(f's_mov_b32 s{cnt}, {SPIN_MAX}')
    a.label(name)
    a.I(f'buffer_load_dwordx2 {vr(v2, 2)}, {vr(vaddr)}, {sr(srd, 4)}, 0 offen sc1')
    a.I(f's_sub_u32 s{cnt}, s{cnt}, 1')
    a.I(f'v_cmp_ne_u64 vcc, s[{S_TAG}:{S_TAG + 1}], {vr(v2, 2)}')
    a.I('s_cselect_b64 vcc, 0, vcc')
    a.I('s_and_b64 exec, exec, vcc')
    a.I(f's_cbranch_scc0 {name}_OK')
    if POLL_SLEEP:
        a.I(f's_sleep {POLL_SLEEP}')
    a.I(f's_branch {name}')
    a.label(name + '_OK')
    a.I('s_mov_b64 exec, -1')


def lane_ids(a, va):
    vi, vq, vw = va(), va(), va()
    a.I(f'v_and_b32 {vr(vi)}, 15, v0')
    a.I(f'v_bfe_u32 {vr(vq)}, v0, 4, 2')
    a.I(f'v_lshrrev_b32 {vr(vw)}, 6, v0')
    return vi, vq, vw


def round_bf16_pair(a, x0, x1, tmp):
    a.I(f'v_cvt_pk_bf16_f32 {vr(tmp)}, {vr(x0)}, {vr(x1)}')
    a.I(f'v_lshlrev_b32 {vr(x0)}, 16, {vr(tmp)}')
    a.I(f'v_and_b32 {vr(x1)}, 0xffff0000, {vr(tmp)}')


def unpack8(a, dst, src):
    for d in range(4):
        a.I(f'v_lshlrev_b32 {vr(dst + 2 * d)}, 16, {vr(src + d)}')
        a.I(f'v_and_b32 {vr(dst + 2 * d + 1)}, 0xffff0000, {vr(src + d)}')


K1_PITCH = 288


def role_k1_main(a):
    PITCH = K1_PITCH
    va = Alloc(1, 256)
    vi, vq, vw = lane_ids(a, va)
    voff0, voff1 = va(), va()
    t0, t1 = va(), va()
    a.I('s_lshr_b32 s41, s2, 5')
    a.I(f'v_lshl_add_u32 {vr(t0)}, s41, 1, {vr(vw)}')
    a.I(f'v_and_b32 {vr(t0)}, 7, {vr(t0)}')
    a.I(f'v_lshl_add_u32 {vr(t0)}, {vr(t0)}, 3, {vr(vq)}')
    a.I(f'v_lshlrev_b32 {vr(voff0)}, 15, {vr(t0)}')
    a.I(f'v_lshl_add_u32 {vr(voff0)}, {vr(vi)}, 4, {vr(voff0)}')
    a.I(f'v_add_u32 {vr(voff1)}, 0x20000, {vr(voff0)}')
    a.I('s_and_b32 s40, s2, 31')
    a.I('s_lshl_b32 s42, s40, 10')
    for j in range(4):
        a.I(f's_add_u32 s43, s41, {j}')
        a.I('s_and_b32 s43, s43, 3')
        a.I('s_lshl_b32 s43, s43, 8')
        a.I(f's_add_u32 s{44 + j}, s42, s43')
    a.srd(24, S_X, 2048 * 1024)
    X = [[va(4) for j in range(4)] for h in range(2)]
    for j in range(4):
        for h in range(2):
            a.I(f'buffer_load_dwordx4 {vr(X[h][j], 4)}, {vr((voff0, voff1)[h])}, s[24:27], s{44 + j} offen')
    a.srd(28, S_WS, WS_END)
    load_tag(a)
    a.I(f'v_readfirstlane_b32 s51, {vr(vw)}')
    vlw, vlr, vst = va(), va(), va()
    a.I(f'v_mul_u32_u24 {vr(vlw)}, {PITCH}, {vr(t0)}')
    a.I(f'v_lshl_add_u32 {vr(vlw)}, {vr(vi)}, 4, {vr(vlw)}')
    vmt, vcb = va(), va()
    a.I(f'v_and_b32 {vr(vmt)}, 3, {vr(vw)}')
    a.I(f'v_lshrrev_b32 {vr(vcb)}, 2, {vr(vw)}')
    a.I(f'v_lshrrev_b32 {vr(t0)}, 2, {vr(vi)}')
    a.I(f'v_lshl_add_u32 {vr(t0)}, {vr(vq)}, 2, {vr(t0)}')
    a.I(f'v_mul_u32_u24 {vr(vlr)}, {PITCH}, {vr(t0)}')
    a.I(f'v_lshl_add_u32 {vr(vlr)}, {vr(vcb)}, 7, {vr(vlr)}')
    a.I(f'v_and_b32 {vr(t0)}, 3, {vr(vi)}')
    a.I(f'v_lshl_add_u32 {vr(vlr)}, {vr(t0)}, 3, {vr(vlr)}')
    a.I(f'v_lshlrev_b32 {vr(vst)}, 19, {vr(vmt)}')
    a.I(f'v_lshl_add_u32 {vr(vst)}, {vr(vq)}, 17, {vr(vst)}')
    a.I(f'v_lshl_add_u32 {vr(vst)}, {vr(vcb)}, 8, {vr(vst)}')
    a.I(f'v_lshl_add_u32 {vr(vst)}, {vr(vi)}, 4, {vr(vst)}')
    a.I('s_lshl_b32 s48, s40, 11')
    a.I('s_lshl_b32 s49, s41, 9')
    a.I('s_add_u32 s48, s48, s49')
    a.I('s_add_u32 s49, s48, 0x10000')
    a.I('s_lshl_b32 s52, s2, 3')
    a.I('s_add_u32 s51, s51, s52')
    a.I('s_lshl_b32 s51, s51, 7')
    a.I(f's_add_u32 s51, s51, 0x{WS_FLAG:x}')
    vrho, vG, vphi, va0 = va(), va(), va(), va()
    a.I(f'v_lshl_add_u32 {vr(vrho)}, {vr(vmt)}, 4, {vr(vi)}')
    a.I(f'v_lshrrev_b32 {vr(vG)}, 1, {vr(vrho)}')
    a.I(f'v_and_b32 {vr(vphi)}, 1, {vr(vrho)}')
    a.I(f'v_cmp_eq_u32 vcc, 1, {vr(vrho)}')
    a.I(f'v_cndmask_b32_e64 {vr(vG)}, {vr(vG)}, 32, vcc')
    a.I(f'v_cndmask_b32_e64 {vr(vphi)}, {vr(vphi)}, 0, vcc')
    a.I(f'v_cvt_f32_u32 {vr(vG)}, {vr(vG)}')
    a.I(f'v_cvt_f32_u32 {vr(vphi)}, {vr(vphi)}')
    a.I(f'v_mul_f32 {vr(vG)}, {lit(1 / 64)}, {vr(vG)}')
    a.I(f'v_mul_f32 {vr(vphi)}, {lit(0.25)}, {vr(vphi)}')
    a.I(f'v_cvt_f32_u32 {vr(t0)}, {vr(vq)}')
    a.I(f'v_mul_f32 {vr(t0)}, 4.0, {vr(t0)}')
    a.I(f'v_fma_f32 {vr(va0)}, {vr(vG)}, {vr(t0)}, {vr(vphi)}')
    AF = [va(4), va(4)]
    tmp = va(8)
    for ks in range(2):
        for j in range(8):
            cst = 32 * ks + 16 * (j // 4) + j % 4
            a.I(f'v_fmamk_f32 {vr(tmp + j)}, {vr(vG)}, {lit(cst)}, {vr(va0)}')
        for j in range(8):
            a.I(f'v_cos_f32 {vr(tmp + j)}, {vr(tmp + j)}')
        for j in range(4):
            a.I(f'v_cvt_pk_bf16_f32 {vr(AF[ks] + j)}, {vr(tmp + 2 * j)}, {vr(tmp + 2 * j + 1)}')
    sm = [va(), va()]
    sq = [va(), va()]
    a.I('s_mov_b32 s50, 0x3f803f80')
    make_tag(a)
    for j in range(4):
        for d in range(4):
            for h in range(2):
                x = vr(X[h][j] + d)
                first = j == 0 and d == 0
                a.I(f'v_dot2_f32_bf16 {vr(sm[h])}, {x}, s50, {"0" if first else vr(sm[h])}')
                a.I(f'v_dot2_f32_bf16 {vr(sq[h])}, {x}, {x}, {"0" if first else vr(sq[h])}')
    a.stamp()
    for ror in (8, 4, 2, 1):
        for r in (sm[0], sq[0], sm[1], sq[1]):
            a.I(f'v_add_f32_dpp {vr(r)}, {vr(r)}, {vr(r)} row_ror:{ror} {DPP_ALL}')
    for h in range(2):
        a.I(f'v_mul_f32 {vr(sm[h])}, {lit(1 / 512)}, {vr(sm[h])}')
        a.I(f'v_mul_f32 {vr(sq[h])}, {lit(1 / 512)}, {vr(sq[h])}')
    for h in range(2):
        a.I(f'v_fma_f32 {vr(sq[h])}, -{vr(sm[h])}, {vr(sm[h])}, {vr(sq[h])}')
    for h in range(2):
        a.I(f'v_max_f32 {vr(sq[h])}, 0, {vr(sq[h])}')
    round_bf16_pair(a, sq[0], sq[1], t0)
    round_bf16_pair(a, sm[0], sm[1], t1)
    for h in range(2):
        a.I(f'v_add_f32 {vr(sq[h])}, {lit(1e-5)}, {vr(sq[h])}')
    round_bf16_pair(a, sq[0], sq[1], t0)
    for h in range(2):
        a.I(f'v_sqrt_f32 {vr(sq[h])}, {vr(sq[h])}')
    round_bf16_pair(a, sq[0], sq[1], t0)
    for h in range(2):
        a.I(f'v_rcp_f32 {vr(sq[h])}, {vr(sq[h])}')
    N = [va(4), va(4)]
    for h in range(2):
        unpack8(a, tmp, X[h][0])
        for d in range(8):
            a.I(f'v_sub_f32 {vr(tmp + d)}, {vr(tmp + d)}, {vr(sm[h])}')
        for d in range(4):
            round_bf16_pair(a, tmp + 2 * d, tmp + 2 * d + 1, N[h] + d)
        for d in range(8):
            a.I(f'v_mul_f32 {vr(tmp + d)}, {vr(tmp + d)}, {vr(sq[h])}')
        for d in range(4):
            a.I(f'v_cvt_pk_bf16_f32 {vr(N[h] + d)}, {vr(tmp + 2 * d)}, {vr(tmp + 2 * d + 1)}')
        a.I(f'ds_write_b128 {vr(vlw)}, {vr(N[h], 4)} offset:{4 * h * PITCH}')
    a.wait(lg=0)
    a.I('s_barrier')
    B = [[va(4) for ks in range(2)] for c in range(4)]
    for ks in range(2):
        for c in range(4):
            for half in range(2):
                off = (32 * ks + 16 * half) * PITCH + 32 * c
                a.I(f'ds_read_b64_tr_b16 {vr(B[c][ks] + 2 * half, 2)}, {vr(vlr)} offset:{off}')
    D = [va(4) for c in range(4)]
    for ks in range(2):
        for c in range(4):
            a.I(f'v_mfma_f32_16x16x32_bf16 {vr(D[c], 4)}, {vr(AF[ks], 4)}, {vr(B[c][ks], 4)}, {"0" if ks == 0 else vr(D[c], 4)}')
    O = [va(4), va(4)]
    for c in range(4):
        for gg in range(2):
            a.I(f'v_cvt_pk_bf16_f32 {vr(O[gg] + c)}, {vr(D[c] + 2 * gg)}, {vr(D[c] + 2 * gg + 1)}')
    for gg in range(2):
        a.I(f'buffer_store_dwordx4 {vr(O[gg], 4)}, {vr(vst)}, s[28:31], s{48 + gg} offen sc1')
    a.stamp()
    put_flag(a, 28, 51, tmp)


def role_mod(a, base, end_label):
    va = Alloc(1, 256)
    a.I(f's_sub_u32 s40, s2, {base}')
    a.I('s_and_b32 s41, s40, 7')
    a.I('s_lshr_b32 s42, s40, 4')
    a.I('s_lshl_b32 s42, s42, 3')
    a.I('s_add_u32 s41, s41, s42')
    a.I('s_lshl_b32 s41, s41, 1')
    a.I('s_bfe_u32 s42, s40, 0x10003')
    a.I('s_add_u32 s41, s41, s42')
    a.I('s_lshl_b32 s44, s41, 6')
    for jj in range(1, 4):
        a.I(f's_add_u32 s{44 + jj}, s44, {jj * 128 * 6144}')
    vrow, vc4, voff, vco = va(), va(), va(), va()
    a.I(f'v_lshrrev_b32 {vr(vrow)}, 2, v0')
    a.I(f'v_and_b32 {vr(vc4)}, 3, v0')
    a.I(f'v_mul_u32_u24 {vr(voff)}, 6144, {vr(vrow)}')
    a.I(f'v_lshl_add_u32 {vr(voff)}, {vr(vc4)}, 4, {vr(voff)}')
    a.I(f'v_lshlrev_b32 {vr(vco)}, 1, {vr(vrow)}')
    a.srd(24, S_C, 1024)
    a.srd(28, S_WMOD, 512 * 6144)
    W = [va(4) for jj in range(4)]
    cv = va(4)
    for jj in range(4):
        a.I(f'buffer_load_ushort {vr(cv + jj)}, {vr(vco)}, s[24:27], 0 offen offset:{256 * jj}')
    for jj in range(4):
        a.I(f'buffer_load_dwordx4 {vr(W[jj], 4)}, {vr(voff)}, s[28:31], s{44 + jj} offen')
    a.srd_off(32, S_WS, WS_MODF, 0x1000)
    a.srd_off(36, S_WS, WS_TAB, 0x1000)
    load_tag(a)
    e = va(4)
    for jj in range(4):
        a.I(f'v_lshlrev_b32 {vr(cv + jj)}, 16, {vr(cv + jj)}')
    for jj in range(4):
        a.I(f'v_mul_f32 {vr(e + jj)}, {lit(-LOG2E)}, {vr(cv + jj)}')
    for jj in range(4):
        a.I(f'v_exp_f32 {vr(e + jj)}, {vr(e + jj)}')
    for jj in range(4):
        a.I(f'v_add_f32 {vr(e + jj)}, 1.0, {vr(e + jj)}')
    for jj in range(4):
        a.I(f'v_rcp_f32 {vr(e + jj)}, {vr(e + jj)}')
    for jj in range(4):
        a.I(f'v_mul_f32 {vr(cv + jj)}, {vr(cv + jj)}, {vr(e + jj)}')
    round_bf16_pair(a, cv, cv + 1, e)
    round_bf16_pair(a, cv + 2, cv + 3, e + 1)
    vl, t0 = va(), va()
    a.I(f'v_lshrrev_b32 {vr(vl)}, 4, v0')
    a.I(f'v_lshlrev_b32 {vr(vl)}, 7, {vr(vl)}')
    a.I(f'v_lshl_add_u32 {vr(vl)}, {vr(vc4)}, 5, {vr(vl)}')
    a.I(f'v_readfirstlane_b32 s54, v0')
    make_tag(a)
    acc = va(8)
    tmp = va(8)
    for jj in range(4):
        unpack8(a, tmp, W[jj])
        for d in range(8):
            if jj == 0:
                a.I(f'v_mul_f32 {vr(acc + d)}, {vr(tmp + d)}, {vr(cv + jj)}')
            else:
                a.I(f'v_fmac_f32 {vr(acc + d)}, {vr(tmp + d)}, {vr(cv + jj)}')
    for ror in (4, 8):
        for d in range(8):
            a.I(f'v_add_f32_dpp {vr(acc + d)}, {vr(acc + d)}, {vr(acc + d)} row_ror:{ror} {DPP_ALL}')
    a.I('s_mov_b32 exec_lo, 0x000f000f')
    a.I('s_mov_b32 exec_hi, 0x000f000f')
    a.I(f'ds_write_b128 {vr(vl)}, {vr(acc, 4)}')
    a.I(f'ds_write_b128 {vr(vl)}, {vr(acc + 4, 4)} offset:16')
    a.I('s_mov_b64 exec, -1')
    a.wait(lg=0)
    a.I('s_barrier')
    a.I('s_cmp_ge_u32 s54, 64')
    a.I(f's_cbranch_scc1 {end_label}')
    vcol = va()
    a.I(f'v_and_b32 {vr(vcol)}, 31, v0')
    a.I(f'v_lshrrev_b32 {vr(t0)}, 5, v0')
    a.I(f'v_lshlrev_b32 {vr(vl)}, 11, {vr(t0)}')
    a.I(f'v_lshl_add_u32 {vr(vl)}, {vr(vcol)}, 2, {vr(vl)}')
    a.I(f'v_add_u32 {vr(t0)}, 1024, {vr(vl)}')
    P = va(16)
    for p in range(8):
        a.I(f'ds_read2_b32 {vr(P + 2 * p, 2)}, {vr(vl if p < 4 else t0)} offset0:{64 * (p % 4)} offset1:{64 * (p % 4) + 32}')
    a.I('s_lshr_b32 s42, s41, 4')
    a.I('s_cmp_eq_u32 s42, 1')
    a.I('s_cselect_b32 s56, 1.0, 0')
    a.I('s_cmp_eq_u32 s42, 4')
    a.I('s_cselect_b32 s56, 1.0, s56')
    a.I('s_cmp_eq_u32 s42, 0')
    a.I(f's_cselect_b32 s57, {lit(2048.0)}, 1.0')
    a.I('s_lshl_b32 s43, s41, 5')
    vj, vp = va(), va()
    a.I(f'v_add_u32 {vr(vj)}, s43, {vr(vcol)}')
    a.I(f'v_and_b32 {vr(vp)}, 0xffffffc0, {vr(vj)}')
    a.I(f'v_and_b32 {vr(vl)}, 15, {vr(vj)}')
    a.I(f'v_lshl_add_u32 {vr(vp)}, {vr(vl)}, 2, {vr(vp)}')
    a.I(f'v_bfe_u32 {vr(vl)}, {vr(vj)}, 4, 2')
    a.I(f'v_add_lshl_u32 {vr(vp)}, {vr(vp)}, {vr(vl)}, 2')
    a.I(f'v_lshlrev_b32 {vr(vj)}, 1, {vr(vj)}')
    a.I(f'v_subrev_u32 {vr(vj)}, 2048, {vr(vj)}')
    for step in (8, 4, 2, 1):
        for p in range(step):
            a.I(f'v_add_f32 {vr(P + p)}, {vr(P + p)}, {vr(P + p + step)}')
    a.I(f'v_mov_b32 {vr(P + 1)}, {vr(P)}')
    a.I(f'v_permlane32_swap_b32 {vr(P)}, {vr(P + 1)}')
    a.I(f'v_add_f32 {vr(P)}, {vr(P)}, {vr(P + 1)}')
    a.I(f'v_cvt_pk_bf16_f32 {vr(P)}, {vr(P)}, {vr(P)}')
    a.I(f'v_lshlrev_b32 {vr(P)}, 16, {vr(P)}')
    a.I(f'v_add_f32 {vr(P)}, s56, {vr(P)}')
    a.I(f'v_cvt_pk_bf16_f32 {vr(P)}, {vr(P)}, {vr(P)}')
    a.I(f'v_lshlrev_b32 {vr(P + 1)}, 16, {vr(P)}')
    a.I(f'v_mul_f32 {vr(P + 1)}, s57, {vr(P + 1)}')
    a.I('s_mov_b32 exec_hi, 0')
    a.I(f'buffer_store_dword {vr(P + 1)}, {vr(vp)}, s[32:35], 0 offen sc1')
    a.I(f'buffer_store_short {vr(P)}, {vr(vj)}, s[36:39], 0 offen sc1')
    a.srd(24, S_WS, WS_END)
    a.I('s_lshl_b32 s58, s41, 7')
    a.I(f's_add_u32 s58, s58, 0x{WS_FLAG + FLAG_M * 128:x}')
    put_flag(a, 24, 58, P + 2)
    a.stamp(1)
    a.st.vm.clear()
    a.wait(lg=0)


def role_fill(a, base, n):
    va = Alloc(1, 256)
    per = 512 * 16
    rounds = -(-SENT_BYTES // (n * per))
    a.I(f's_sub_u32 s40, s2, {base}')
    a.I(f's_mul_i32 s41, s40, {rounds * per}')
    voff = va()
    a.I(f'v_lshlrev_b32 {vr(voff)}, 4, v0')
    F, Z, Wr = va(4), va(4), va(4)
    for d in range(4):
        a.I(f'v_mov_b32 {vr(F + d)}, -1')
        a.I(f'v_mov_b32 {vr(Z + d)}, 0')
    a.srd(24, S_WR, 1024)
    a.I(f'buffer_load_dwordx4 {vr(Wr, 4)}, {vr(voff)}, s[24:27], s41 offen')
    load_tag(a)
    a.srd_off(28, S_WS, WS_SENT, SENT_BYTES)
    a.srd_off(32, S_WS, WS_ZERO, ZERO_BYTES)
    a.srd_off(36, S_WS, WS_TAB + 4096, 1024)
    a.I('s_lshl_b32 s43, s40, 13')
    a.I(f'buffer_store_dwordx4 {vr(Z, 4)}, {vr(voff)}, s[32:35], s43 offen sc1')
    for r in range(rounds):
        a.I(f'buffer_store_dwordx4 {vr(F, 4)}, {vr(voff)}, s[28:31], s{41 if r == 0 else 42} offen sc1')
        if r + 1 < rounds:
            a.I(f's_add_u32 s42, s41, {(r + 1) * per}')
    a.I(f'buffer_store_dwordx4 {vr(Wr, 4)}, {vr(voff)}, s[36:39], s41 offen sc1')
    make_tag(a)
    a.srd(24, S_WS, WS_END)
    a.I('v_readfirstlane_b32 s44, v0')
    a.I('s_lshl_b32 s45, s40, 7')
    a.I(f's_add_u32 s45, s45, 0x{WS_FLAG + FLAG_F * 128:x}')
    a.I('s_cmp_eq_u32 s44, 0')
    a.I('s_cselect_b32 s45, s45, 0x7fff0000')
    a.wait(vm=0)
    a.I('s_barrier')
    put_flag(a, 24, 45, Z)
    a.stamp(1)
    a.st.vm.clear()
    a.wait(lg=0)


def wave_sum(a, regs):
    for m in ('quad_perm:[1,0,3,2]', 'quad_perm:[2,3,0,1]', 'row_half_mirror', 'row_mirror'):
        for r in regs:
            a.I(f'v_add_f32_dpp {vr(r)}, {vr(r)}, {vr(r)} {m} {DPP_ALL}')
    for r in regs:
        a.I(f'v_add_f32_dpp {vr(r)}, {vr(r)}, {vr(r)} row_bcast:15 row_mask:0xa bank_mask:0xf')
    for r in regs:
        a.I(f'v_add_f32_dpp {vr(r)}, {vr(r)}, {vr(r)} row_bcast:31 row_mask:0xc bank_mask:0xf')


L_P = LDS2
L_TAB = LDS2 + 16384
L_Y = LDS2 + 24576
L_KEY = L_Y + 8 * 2304
L_ROW_END = L_KEY + 64


def role_rows(a):
    va = Alloc(1, 256)
    vi, vq, vw = lane_ids(a, va)
    voff, ve, vcw, vmo, vfl = va(), va(), va(), va(), va()
    t0, t1 = va(), va()
    a.I('s_lshr_b32 s41, s2, 5')
    a.I('s_and_b32 s40, s2, 31')
    a.I(f'v_readfirstlane_b32 s49, {vr(vw)}')
    a.I(f'v_lshlrev_b32 {vr(ve)}, 6, {vr(vi)}')
    a.I(f'v_lshl_add_u32 {vr(ve)}, {vr(vq)}, 4, {vr(ve)}')
    a.I('s_cmp_eq_u32 s40, 0')
    a.I('s_cselect_b32 s50, 5, 6')
    a.I(f's_cselect_b32 s53, 0, {lit(-0.25)}')
    a.I('s_cselect_b64 s[54:55], -1, 0')
    a.I('s_lshl_b32 s51, s41, 3')
    a.I('s_lshl_b32 s51, s51, s50')
    a.I('s_add_u32 s51, s51, s40')
    a.I('s_lshl_b32 s52, s49, s50')
    a.I('s_add_u32 s52, s52, s51')
    a.I('s_sub_u32 s56, 2048, s52')
    a.I('s_lshl_b32 s57, s52, 10')
    a.I('s_lshl_b32 s58, s56, 10')
    a.srd(32, S_X, 2048 * 1024)
    L = [va(16), va(16)]
    XR = [L[0], L[0] + 4]
    a.I(f'buffer_load_dwordx4 {vr(XR[0], 4)}, {vr(ve)}, s[32:35], s57 offen')
    a.I(f'buffer_load_dwordx4 {vr(XR[1], 4)}, {vr(ve)}, s[32:35], s58 offen')
    a.srd(24, S_WS, WS_END)
    a.srd_off(28, S_WS, WS_TAB, 5 * 1024)
    a.srd(36, S_OUT, 2048 * 1024)
    a.I(f'v_lshl_add_u32 {vr(vcw)}, s41, 1, {vr(vw)}')
    a.I(f'v_and_b32 {vr(vcw)}, 7, {vr(vcw)}')
    a.I(f'v_lshlrev_b32 {vr(vmo)}, 8, {vr(vcw)}')
    a.I(f'v_lshl_add_u32 {vr(vmo)}, {vr(vi)}, 4, {vr(vmo)}')
    a.I(f'v_lshl_add_u32 {vr(voff)}, {vr(vq)}, 13, {vr(vmo)}')
    a.I('s_lshl_b32 s42, s40, 16')
    a.I('s_add_u32 s43, s42, 4096')
    a.I('s_add_u32 s44, s42, 0x8000')
    a.I('s_add_u32 s45, s42, 0x9000')
    a.I('s_lshl_b32 s46, s49, 10')
    a.I(f's_add_u32 m0, s46, {L_TAB}')
    a.I(f's_mov_b32 s47, 0x{WS_MODF:x}')
    a.I('s_cmp_eq_u32 s2, 0')
    a.I('s_cselect_b32 s48, s47, 0x7fff0000')
    a.I('s_cmp_eq_u32 s2, 128')
    a.I('s_cselect_b32 s61, s49, 0')
    a.I('s_cmp_eq_u32 s61, 0')
    a.I('s_cselect_b32 s59, 0xfffffe00, 0')
    a.I('s_cselect_b32 s57, s57, 0x7fff0000')
    a.I('s_and_b32 s61, s52, 1023')
    a.I('s_cmp_lg_u32 s61, 0')
    a.I('s_cselect_b32 s60, s59, 0')
    a.I('s_cmp_lg_u32 s60, 0')
    a.I('s_cselect_b32 s58, s58, 0x7fff0000')
    vln = va()
    a.I(f'v_and_b32 {vr(vln)}, 63, v0')
    a.I(f'v_lshrrev_b32 {vr(t0)}, 1, {vr(vcw)}')
    a.I(f'v_lshl_add_u32 {vr(t0)}, {vr(t0)}, 5, {vr(vln)}')
    a.I(f'v_and_b32 {vr(t1)}, 1, {vr(vcw)}')
    a.I(f'v_lshlrev_b32 {vr(t1)}, 2, {vr(t1)}')
    a.I(f'v_lshl_add_u32 {vr(vfl)}, {vr(t0)}, 3, {vr(t1)}')
    a.I('s_lshr_b32 s61, s40, 3')
    a.I(f'v_add_u32 {vr(vfl)}, s61, {vr(vfl)}')
    a.I('s_lshl_b32 s61, s49, 4')
    a.I('s_add_u32 s61, s61, 32')
    a.I('s_min_u32 s61, s61, 97')
    a.I(f's_add_u32 s61, s61, {FLAG_M}')
    a.I(f'v_add_u32 {vr(t0)}, s61, {vr(vi)}')
    a.I(f'v_cmp_eq_u32 vcc, 2, {vr(vq)}')
    a.I(f'v_cndmask_b32 {vr(vfl)}, {vr(vfl)}, {vr(t0)}, vcc')
    a.I(f'v_and_b32 {vr(t0)}, 2, {vr(vi)}')
    a.I(f'v_and_b32 {vr(t1)}, 1, {vr(vi)}')
    a.I(f'v_lshl_add_u32 {vr(t0)}, {vr(t0)}, 3, {vr(t1)}')
    a.I(f'v_lshl_add_u32 {vr(t0)}, {vr(vcw)}, 1, {vr(t0)}')
    a.I(f'v_add_u32 {vr(t0)}, {FLAG_M}, {vr(t0)}')
    a.I(f'v_cmp_eq_u32 vcc, 3, {vr(vq)}')
    a.I(f'v_cndmask_b32 {vr(vfl)}, {vr(vfl)}, {vr(t0)}, vcc')
    a.I(f'v_lshlrev_b32 {vr(vfl)}, 7, {vr(vfl)}')
    a.I(f'v_add_u32 {vr(vfl)}, 0x{WS_FLAG:x}, {vr(vfl)}')
    vts, vb0, vb1, vmask, vqf = va(), va(), va(), va(), va()
    a.I(f'v_lshrrev_b32 {vr(t0)}, 1, {vr(vi)}')
    a.I(f'v_lshlrev_b32 {vr(t0)}, s50, {vr(t0)}')
    a.I(f'v_add_u32 {vr(t0)}, s51, {vr(t0)}')
    a.I(f'v_cvt_f32_u32 {vr(vts)}, {vr(t0)}')
    a.I(f'v_mul_f32 {vr(vts)}, {lit(1 / 2048)}, {vr(vts)}')
    a.I(f'v_cvt_f32_u32 {vr(t0)}, {vr(t1)}')
    a.I(f'v_mul_f32 {vr(t0)}, {lit(0.25)}, {vr(t0)}')
    a.I(f'v_cvt_f32_u32 {vr(vqf)}, {vr(vq)}')
    a.I(f'v_mul_f32 {vr(vqf)}, 4.0, {vr(vqf)}')
    a.I(f'v_fma_f32 {vr(vb0)}, {vr(vts)}, {vr(vqf)}, {vr(t0)}')
    a.I(f'v_add_f32 {vr(vb1)}, s53, {vr(vb0)}')
    a.I(f'v_and_b32 {vr(t0)}, 2, {vr(vi)}')
    a.I(f'v_lshlrev_b32 {vr(t0)}, 3, {vr(t0)}')
    a.I(f'v_mov_b32 {vr(t1)}, 0xffff')
    a.I(f'v_lshlrev_b32 {vr(vmask)}, {vr(t0)}, {vr(t1)}')
    a.I(f'v_cndmask_b32_e64 {vr(vmask)}, -1, {vr(vmask)}, s[54:55]')
    AF = [va(4), va(4)]
    tmp, tmp2 = va(8), va(8)
    for ks in range(2):
        for j in range(8):
            a.I(f'v_fmamk_f32 {vr(tmp + j)}, {vr(vts)}, {lit(16 * ks + j // 2)}, {vr((vb0, vb1)[j % 2])}')
        for j in range(8):
            a.I(f'v_cos_f32 {vr(tmp + j)}, {vr(tmp + j)}')
        for j in range(4):
            a.I(f'v_cvt_pk_bf16_f32 {vr(AF[ks] + j)}, {vr(tmp + 2 * j)}, {vr(tmp + 2 * j + 1)}')
        for j in range(4):
            a.I(f'v_and_b32 {vr(AF[ks] + j)}, {vr(vmask)}, {vr(AF[ks] + j)}')
    vlw, vlr, vll = vts, vb0, vb1
    a.I(f'v_lshlrev_b32 {vr(vlw)}, 12, {vr(vq)}')
    a.I(f'v_lshrrev_b32 {vr(t0)}, 1, {vr(vcw)}')
    a.I(f'v_lshl_add_u32 {vr(vlw)}, {vr(t0)}, 8, {vr(vlw)}')
    a.I(f'v_lshl_add_u32 {vr(vlw)}, {vr(vi)}, 4, {vr(vlw)}')
    a.I(f'v_and_b32 {vr(t0)}, 1, {vr(vcw)}')
    a.I(f'v_lshl_add_u32 {vr(vlw)}, {vr(t0)}, 3, {vr(vlw)}')
    a.I(f'v_lshlrev_b32 {vr(vll)}, 4, {vr(vln)}')
    a.I(f'v_lshl_add_u32 {vr(vlr)}, {vr(vw)}, 11, {vr(vll)}')
    E1 = [va(), va()]
    a.I(f'v_lshrrev_b32 {vr(t0)}, 2, {vr(vi)}')
    a.I(f'v_and_b32 {vr(t1)}, 3, {vr(vi)}')
    a.I(f'v_lshl_add_u32 {vr(t0)}, {vr(t0)}, 3, {vr(t1)}')
    a.I(f'v_cvt_f32_u32 {vr(E1[0])}, {vr(t0)}')
    a.I(f'v_add_f32 {vr(E1[1])}, 4.0, {vr(E1[0])}')
    CT, ST, NT = [va(4), va(4)], [va(4), va(4)], [va(4), va(4)]
    for T in range(2):
        a.I(f'v_mul_f32 {vr(t0)}, {lit(1 / 32)}, {vr(E1[T])}')
        a.I(f'v_mul_f32 {vr(t1)}, {vr(vqf)}, {vr(t0)}')
        a.I(f'v_add_f32 {vr(t1)}, {vr(t1)}, {vr(t1)}')
        for j in range(8):
            a.I(f'v_fmamk_f32 {vr(tmp + j)}, {vr(t0)}, {lit(j)}, {vr(t1)}')
        for j in range(8):
            a.I(f'v_sin_f32 {vr(tmp2 + j)}, {vr(tmp + j)}')
            a.I(f'v_cos_f32 {vr(tmp + j)}, {vr(tmp + j)}')
        for j in range(4):
            a.I(f'v_cvt_pk_bf16_f32 {vr(CT[T] + j)}, {vr(tmp + 2 * j)}, {vr(tmp + 2 * j + 1)}')
            a.I(f'v_cvt_pk_bf16_f32 {vr(ST[T] + j)}, {vr(tmp2 + 2 * j)}, {vr(tmp2 + 2 * j + 1)}')
        for j in range(4):
            a.I(f'v_xor_b32 {vr(NT[T] + j)}, 0x80008000, {vr(ST[T] + j)}')
    WC, WS_ = [va(4), va(4)], [va(4), va(4)]
    for T in range(2):
        a.I(f'v_mul_f32 {vr(t0)}, {lit(1 / 512)}, {vr(E1[T])}')
        a.I(f'v_mul_f32 {vr(t1)}, {vr(vqf)}, {vr(t0)}')
        for r in range(4):
            a.I(f'v_fmamk_f32 {vr(tmp + r)}, {vr(t0)}, {lit(r)}, {vr(t1)}')
        for r in range(4):
            a.I(f'v_cos_f32 {vr(WC[T] + r)}, {vr(tmp + r)}')
            a.I(f'v_sin_f32 {vr(WS_[T] + r)}, {vr(tmp + r)}')
    FC = va(4)
    a.I(f'v_cvt_f32_u32 {vr(t0)}, {vr(vi)}')
    a.I(f'v_mul_f32 {vr(t0)}, {lit(1 / 16)}, {vr(t0)}')
    a.I(f'v_mul_f32 {vr(t1)}, {vr(vqf)}, {vr(t0)}')
    for r in range(4):
        a.I(f'v_fmamk_f32 {vr(tmp + r)}, {vr(t0)}, {lit(r)}, {vr(t1)}')
    for r in range(4):
        a.I(f'v_sin_f32 {vr(tmp + 4 + r)}, {vr(tmp + r)}')
        a.I(f'v_cos_f32 {vr(tmp + r)}, {vr(tmp + r)}')
    for j in range(4):
        a.I(f'v_cvt_pk_bf16_f32 {vr(FC + j)}, {vr(tmp + 2 * j)}, {vr(tmp + 2 * j + 1)}')
    vyw, vyr, vy0 = E1[0], E1[1], vqf
    a.I(f's_mul_i32 s62, s49, 2304')
    a.I(f's_add_u32 s62, s62, {L_Y}')
    a.I(f'v_mul_u32_u24 {vr(vyw)}, 144, {vr(vi)}')
    a.I(f'v_lshl_add_u32 {vr(vyw)}, {vr(vq)}, 5, {vr(vyw)}')
    a.I(f's_add_u32 s63, s62, {144 * 15 + 96}')
    a.I(f'v_sub_u32 {vr(vyr)}, s63, {vr(vyw)}')
    a.I(f'v_add_u32 {vr(vyw)}, s62, {vr(vyw)}')
    a.I(f'v_lshl_add_u32 {vr(t0)}, {vr(vi)}, 2, {vr(vq)}')
    a.I(f'v_sub_u32 {vr(t0)}, 64, {vr(t0)}')
    a.I(f'v_and_b32 {vr(t0)}, 63, {vr(t0)}')
    a.I(f'v_lshrrev_b32 {vr(t1)}, 2, {vr(t0)}')
    a.I(f'v_lshlrev_b32 {vr(t1)}, 4, {vr(t1)}')
    a.I(f'v_lshl_add_u32 {vr(vy0)}, {vr(t0)}, 5, {vr(t1)}')
    a.I(f'v_add_u32 {vr(vy0)}, s62, {vr(vy0)}')
    vkm, vkl, vka, vkr = vmask, va(), va(), va()
    a.I(f'v_lshrrev_b32 {vr(t0)}, 5, {vr(vln)}')
    a.I(f'v_lshl_add_u32 {vr(vkl)}, {vr(vw)}, 1, {vr(t0)}')
    a.I(f'v_lshlrev_b32 {vr(vka)}, 2, {vr(vkl)}')
    a.I(f'v_add_u32 {vr(vkl)}, 1, {vr(vkl)}')
    a.I(f'v_mov_b32 {vr(vkm)}, s59')
    a.I(f'v_mov_b32 {vr(t1)}, s60')
    a.I(f'v_cmp_eq_u32 vcc, 1, {vr(t0)}')
    a.I(f'v_cndmask_b32 {vr(vkm)}, {vr(vkm)}, {vr(t1)}, vcc')
    a.I(f'v_lshlrev_b32 {vr(vkr)}, 2, {vr(vi)}')
    a.I('s_lshl_b32 s54, s2, 7')
    a.I(f's_add_u32 s54, s54, 0x{WS_KEY:x}')
    a.I('s_lshl_b32 s61, s2, 1')
    a.I('s_sub_u32 s61, 511, s61')
    a.I('s_sub_u32 s64, s61, 1')
    a.I('s_mov_b32 s62, 0xffff')
    a.I('s_mov_b32 s63, 0')
    XF = [va(8), va(8)]
    unpack8(a, XF[0], XR[0])
    unpack8(a, XF[1], XR[1])
    a.stamp()
    a.wait(lg=0)
    poll_flags(a, 'R_POLL', 24, vfl, tmp, 65)
    a.stamp()
    a.I(f'buffer_load_dwordx4 {vr(ve)}, s[28:31], s46 offen sc1 lds')
    CA, SA = va(4), va(4)
    for ks in range(2):
        for mm in range(4):
            a.I(f'buffer_load_dwordx4 {vr(L[ks] + 4 * mm, 4)}, {vr(voff)}, s[24:27], s{42 + 2 * ks + mm // 2} offen offset:{2048 * (mm % 2)} sc1')
    a.I(f'buffer_load_dwordx4 {vr(CA, 4)}, {vr(vmo)}, s[24:27], s47 offen offset:2048 sc1')
    a.I(f'buffer_load_dwordx4 {vr(SA, 4)}, {vr(vmo)}, s[24:27], s48 offen sc1')
    a.wait(vm=10)
    a.I('s_barrier')
    D = [va(4) for c in range(4)]
    TB = [D[0], D[1], D[2], D[3], tmp]
    for k in (4, 2, 1, 0, 3):
        a.I(f'ds_read_b128 {vr(TB[k], 4)}, {vr(vll)} offset:{L_TAB + 1024 * k}')
    GA, SBv, CB, GB, WF = va(8), va(8), va(8), va(8), va(8)
    unpack8(a, WF, TB[4])
    unpack8(a, CB, TB[2])
    unpack8(a, SBv, TB[1])
    s_cw, s_sw = t0, t1
    for d in range(8):
        if d == 0:
            a.I(f'v_mul_f32 {vr(s_sw)}, {vr(SBv)}, {vr(WF)}')
        else:
            a.I(f'v_fmac_f32 {vr(s_sw)}, {vr(SBv + d)}, {vr(WF + d)}')
        a.I(f'v_mul_f32 {vr(WF + d)}, {vr(CB + d)}, {vr(WF + d)}')
    a.I(f'v_add_f32 {vr(s_cw)}, {vr(WF)}, {vr(WF + 1)}')
    for d in range(2, 8):
        a.I(f'v_add_f32 {vr(s_cw)}, {vr(s_cw)}, {vr(WF + d)}')
    unpack8(a, GA, TB[0])
    a.I(f'v_permlane32_swap_b32 {vr(s_cw)}, {vr(s_sw)}')
    a.I(f'v_add_f32 {vr(s_cw)}, {vr(s_cw)}, {vr(s_sw)}')
    fill = []
    for d in range(4):
        fill += [f'v_lshlrev_b32 {vr(GB + 2 * d)}, 16, {vr(TB[3] + d)}', f'v_and_b32 {vr(GB + 2 * d + 1)}, 0xffff0000, {vr(TB[3] + d)}']
    for n, m in enumerate(('quad_perm:[1,0,3,2]', 'quad_perm:[2,3,0,1]', 'row_half_mirror', 'row_mirror')):
        a.I(fill[2 * n])
        a.I(fill[2 * n + 1])
        a.I(f'v_add_f32_dpp {vr(s_cw)}, {vr(s_cw)}, {vr(s_cw)} {m} {DPP_ALL}')
    a.I(f'v_add_f32_dpp {vr(s_cw)}, {vr(s_cw)}, {vr(s_cw)} row_bcast:15 row_mask:0xa bank_mask:0xf')
    a.I(f'v_readlane_b32 s50, {vr(s_cw)}, 31')
    a.I(f'v_readlane_b32 s51, {vr(s_cw)}, 63')
    a.stamp()
    for ks in range(2):
        for x in range(4):
            for y in range(x + 1, 4):
                a.I(f'v_swap_b32 {vr(L[ks] + 4 * x + y)}, {vr(L[ks] + 4 * y + x)}')
        for c in range(4):
            a.I(f'v_mfma_f32_16x16x32_bf16 {vr(D[c], 4)}, {vr(AF[ks], 4)}, {vr(L[ks] + 4 * c, 4)}, {"0" if ks == 0 else vr(D[c], 4)}')
    for c in range(4):
        a.I(f'v_cndmask_b32_e64 {vr(SA + c)}, 0, {vr(SA + c)}, s[62:63]')
    for c in range(4):
        a.I(f'v_fma_f32 {vr(D[c])}, {vr(D[c])}, {vr(CA + c)}, {vr(SA + c)}')
        for r in range(1, 4):
            a.I(f'v_mul_f32 {vr(D[c] + r)}, {vr(D[c] + r)}, {vr(CA + c)}')
    for r in range(4):
        a.I(f'v_cvt_pk_bf16_f32 {vr(tmp + 2 * r)}, {vr(D[0] + r)}, {vr(D[1] + r)}')
        a.I(f'v_cvt_pk_bf16_f32 {vr(tmp + 2 * r + 1)}, {vr(D[2] + r)}, {vr(D[3] + r)}')
        a.I(f'ds_write_b64 {vr(vlw)}, {vr(tmp + 2 * r, 2)} offset:{L_P + 1024 * r}')
    a.wait(lg=0)
    a.I('s_barrier')
    a.stamp()
    vb = Alloc(L[0], L[0] + 32)
    PR, PI = vb(4), vb(4)
    a.I(f'ds_read_b128 {vr(PR, 4)}, {vr(vlr)} offset:{L_P}')
    a.I(f'ds_read_b128 {vr(PI, 4)}, {vr(vlr)} offset:{L_P + 1024}')
    QR, QI = [vb(4), vb(4)], [vb(4), vb(4)]
    for T in range(2):
        a.I(f'v_mfma_f32_16x16x32_bf16 {vr(QR[T], 4)}, {vr(PR, 4)}, {vr(CT[T], 4)}, 0')
        a.I(f'v_mfma_f32_16x16x32_bf16 {vr(QI[T], 4)}, {vr(PR, 4)}, {vr(NT[T], 4)}, 0')
        a.I(f'v_mfma_f32_16x16x32_bf16 {vr(QR[T], 4)}, {vr(PI, 4)}, {vr(ST[T], 4)}, {vr(QR[T], 4)}')
        a.I(f'v_mfma_f32_16x16x32_bf16 {vr(QI[T], 4)}, {vr(PI, 4)}, {vr(CT[T], 4)}, {vr(QI[T], 4)}')
    Y = D[0]
    QA = [vb(4), vb(4)]
    for T in range(2):
        tt = (tmp, tmp2)[T]
        for r in range(4):
            a.I(f'v_mul_f32 {vr(tt + r)}, {vr(QR[T] + r)}, {vr(WC[T] + r)}')
        for r in range(4):
            a.I(f'v_mul_f32 {vr(tt + 4 + r)}, {vr(QI[T] + r)}, {vr(WC[T] + r)}')
        for r in range(4):
            a.I(f'v_fmac_f32 {vr(tt + r)}, {vr(QI[T] + r)}, {vr(WS_[T] + r)}')
            a.I(f'v_fma_f32 {vr(tt + 4 + r)}, -{vr(QR[T] + r)}, {vr(WS_[T] + r)}, {vr(tt + 4 + r)}')
        for j in range(4):
            a.I(f'v_cvt_pk_bf16_f32 {vr(QA[T] + j)}, {vr(tt + 2 * j)}, {vr(tt + 2 * j + 1)}')
        a.I(f'v_mfma_f32_16x16x32_bf16 {vr(Y + 4 * T, 4)}, {vr(QA[T], 4)}, {vr(FC, 4)}, 0')
    s_x, s_xx, s_xw = [CA, CA + 1], [CA + 2, CA + 3], [SA, SA + 1]
    YM = D[2]
    ym0 = t0

    def x1_and_sums(k, lo, hi):
        X = XF[k]
        for d in range(lo, hi):
            src = Y + d if k == 0 else (ym0 if d == 0 else YM + 8 - d)
            a.I(f'v_fmac_f32 {vr(X + d)}, {vr(GA + d)}, {vr(src)}')
        for d in range(lo, hi):
            if d == 0:
                a.I(f'v_mul_f32 {vr(s_xx[k])}, {vr(X)}, {vr(X)}')
                a.I(f'v_mul_f32 {vr(s_xw[k])}, {vr(X)}, {vr(WF)}')
                continue
            a.I(f'v_add_f32 {vr(s_x[k])}, {vr(X if d == 1 else s_x[k])}, {vr(X + d)}')
            a.I(f'v_fmac_f32 {vr(s_xx[k])}, {vr(X + d)}, {vr(X + d)}')
            a.I(f'v_fmac_f32 {vr(s_xw[k])}, {vr(X + d)}, {vr(WF + d)}')
    a.I(f'ds_write_b128 {vr(vyw)}, {vr(Y, 4)}')
    x1_and_sums(0, 0, 4)
    a.I(f'ds_write_b128 {vr(vyw)}, {vr(Y + 4, 4)} offset:16')
    a.I(f'ds_read_b128 {vr(YM, 4)}, {vr(vyr)}')
    a.I(f'ds_read_b128 {vr(YM + 4, 4)}, {vr(vyr)} offset:16')
    a.I(f'ds_read_b32 {vr(ym0)}, {vr(vy0)}')
    x1_and_sums(0, 4, 8)
    x1_and_sums(1, 0, 8)
    red = [s_x[0], s_xx[0], s_xw[0]]
    for s in (s_x, s_xx, s_xw):
        a.I(f'v_permlane32_swap_b32 {vr(s[0])}, {vr(s[1])}')
    for s in (s_x, s_xx, s_xw):
        a.I(f'v_add_f32 {vr(s[0])}, {vr(s[0])}, {vr(s[1])}')
    for m in ('quad_perm:[1,0,3,2]', 'quad_perm:[2,3,0,1]', 'row_half_mirror', 'row_mirror'):
        for r in red:
            a.I(f'v_add_f32_dpp {vr(r)}, {vr(r)}, {vr(r)} {m} {DPP_ALL}')
    for r in red:
        a.I(f'v_add_f32_dpp {vr(r)}, {vr(r)}, {vr(r)} row_bcast:15 row_mask:0xa bank_mask:0xf')
    mu, vv, rr = red
    a.I(f'v_mul_f32 {vr(mu)}, {lit(1 / 512)}, {vr(mu)}')
    a.I(f'v_mul_f32 {vr(vv)}, {lit(1 / 512)}, {vr(vv)}')
    a.I(f'v_fma_f32 {vr(vv)}, -{vr(mu)}, {vr(mu)}, {vr(vv)}')
    a.I(f'v_max_f32 {vr(vv)}, 0, {vr(vv)}')
    a.I(f'v_add_f32 {vr(vv)}, {lit(1e-5)}, {vr(vv)}')
    a.I(f'v_rsq_f32 {vr(vv)}, {vr(vv)}')
    a.I(f'v_fma_f32 {vr(rr)}, -{vr(mu)}, s50, {vr(rr)}')
    a.I(f'v_fma_f32 {vr(rr)}, {vr(rr)}, {vr(vv)}, s51')
    KY = tmp
    a.I(f'v_ashrrev_i32 {vr(KY)}, 31, {vr(rr)}')
    a.I(f'v_or_b32 {vr(KY)}, 0x80000000, {vr(KY)}')
    a.I(f'v_xor_b32 {vr(KY)}, {vr(KY)}, {vr(rr)}')
    a.I(f'v_and_or_b32 {vr(KY)}, {vr(KY)}, {vr(vkm)}, {vr(vkl)}')
    a.I('s_mov_b32 exec_lo, 0x80000000')
    a.I('s_mov_b32 exec_hi, 0x80000000')
    a.I(f'ds_write_b32 {vr(vka)}, {vr(KY)} offset:{L_KEY}')
    a.I('s_mov_b64 exec, -1')
    a.I(f'v_mul_f32 {vr(mu)}, {vr(mu)}, {vr(vv)}')
    for k in range(2):
        a.I(f'v_readlane_b32 s{46 + k}, {vr(KY)}, {31 + 32 * k}')
    a.stamp()
    a.wait(lg=0)
    a.I('s_barrier')
    kall = t0
    a.I(f'ds_read_b32 {vr(kall)}, {vr(vkr)} offset:{L_KEY}')
    for k in range(2):
        a.I(f'v_readlane_b32 s{66 + k}, {vr(vv)}, {31 + 32 * k}')
        a.I(f'v_readlane_b32 s{44 + k}, {vr(mu)}, {31 + 32 * k}')
    a.I('s_max_u32 s48, s46, s47')
    a.I('s_and_b32 s65, s48, 0xfffffe00')
    a.I('s_or_b32 s65, s65, s61')
    a.I(f'v_mov_b32 {vr(KY)}, s65')
    H = [D[0], D[2]]
    HB = [QR[0], QR[1]]
    O = [QI[0], QI[1]]
    mk = [CA, CA + 1]
    for k in range(2):
        a.I(f'v_mov_b32 {vr(mk[k])}, s{44 + k}')
    a.I(f'v_cmp_gt_u32 vcc, s48, {vr(kall)}')
    for kk in range(2):
        a.I(f'v_cmp_lt_u32_e64 s[{40 + 2 * kk}:{41 + 2 * kk}], s{46 + kk}, {vr(kall)}')
    a.I(f'v_cndmask_b32 {vr(KY + 1)}, 0, {vr(kall)}, vcc')
    fill = [f'v_fma_f32 {vr(H[0] + d)}, {vr(XF[0] + d)}, s66, -{vr(mk[0])}' for d in range(8)]
    for n, m in enumerate(('quad_perm:[1,0,3,2]', 'quad_perm:[2,3,0,1]', 'row_half_mirror', 'row_mirror')):
        a.I(fill[2 * n])
        a.I(fill[2 * n + 1])
        a.I(f'v_max_u32_dpp {vr(KY + 1)}, {vr(KY + 1)}, {vr(KY + 1)} {m} {DPP_ALL}')
    a.I('s_and_b32 s55, vcc_lo, 0xffff')
    a.I('s_bcnt1_i32_b32 s55, s55')
    a.I('s_cmp_eq_u32 s55, 15')
    a.I('s_cselect_b32 s54, s54, 0x7fff0000')
    a.I(f'v_and_b32 {vr(KY + 1)}, 0xfffffe00, {vr(KY + 1)}')
    a.I(f'v_or_b32 {vr(KY + 1)}, s64, {vr(KY + 1)}')
    a.I('s_mov_b64 exec, 1')
    a.I(f'buffer_store_dwordx2 {vr(KY, 2)}, off, s[24:27], s54 sc1')
    a.I('s_mov_b64 exec, -1')
    a.stamp()
    for kk in range(2):
        a.I(f's_and_b32 s{40 + 2 * kk}, s{40 + 2 * kk}, 0xffff')
        a.I(f's_bcnt1_i32_b32 s{40 + 2 * kk}, s{40 + 2 * kk}')
        a.I(f's_sub_u32 s{41 + 2 * kk}, s61, s{40 + 2 * kk}')
        a.I(f's_lshl_b32 s{50 + kk}, s{41 + 2 * kk}, 10')
        a.I(f's_add_u32 s{50 + kk}, s{50 + kk}, 0x{WS_H2 - 254 * 1024:x}')
        a.I(f's_lshl_b32 s{62 + kk}, s{41 + 2 * kk}, 2')
        a.I(f's_add_u32 s{62 + kk}, s{62 + kk}, 0x{WS_DONE - 254 * 4:x}')
        a.I(f's_cmp_lt_u32 s{40 + 2 * kk}, 2')
        a.I(f's_cselect_b32 s{50 + kk}, s{50 + kk}, 0x7fff0000')
        a.I(f's_cselect_b32 s{62 + kk}, s{62 + kk}, 0x7fff0000')
    for k in range(2):
        if k == 1:
            for d in range(8):
                a.I(f'v_fma_f32 {vr(H[k] + d)}, {vr(XF[k] + d)}, s{66 + k}, -{vr(mk[k])}')
        for d in range(8):
            a.I(f'v_fma_f32 {vr(H[k] + d)}, {vr(H[k] + d)}, {vr(CB + d)}, {vr(SBv + d)}')
        for d in range(4):
            a.I(f'v_cvt_pk_bf16_f32 {vr(HB[k] + d)}, {vr(H[k] + 2 * d)}, {vr(H[k] + 2 * d + 1)}')
        a.I(f'buffer_store_dwordx4 {vr(HB[k], 4)}, {vr(ve)}, s[24:27], s{50 + k} offen sc1')
    for k in range(2):
        for d in range(8):
            a.I(f'v_fmac_f32 {vr(XF[k] + d)}, {vr(GB + d)}, {vr(H[k] + d)}')
        for d in range(4):
            a.I(f'v_cvt_pk_bf16_f32 {vr(O[k] + d)}, {vr(XF[k] + 2 * d)}, {vr(XF[k] + 2 * d + 1)}')
        a.I(f'buffer_store_dwordx4 {vr(O[k], 4)}, {vr(ve)}, s[36:39], s{57 + k} offen{OUT_SC}')
    a.I('s_add_u32 s52, s52, 1')
    a.I('s_add_u32 s56, s56, 1')
    a.I(f'v_mov_b32 {vr(KY)}, s52')
    a.I(f'v_mov_b32 {vr(KY + 1)}, s56')
    a.I('s_mov_b64 exec, 1')
    a.wait(vm=0)
    for kk in range(2):
        a.I(f'buffer_store_dword {vr(KY + kk)}, off, s[24:27], s{62 + kk} sc1')


def top2_merge(a, m1, m2, o1, o2, t):
    a.I(f'v_min_u32 {vr(t)}, {vr(m1)}, {vr(o1)}')
    a.I(f'v_max_u32 {vr(m1)}, {vr(m1)}, {vr(o1)}')
    a.I(f'v_max3_u32 {vr(m2)}, {vr(m2)}, {vr(o2)}, {vr(t)}')


F_W = LDS2
F_PART = LDS2 + 32768


def role_ffn(a, base, end_label):
    va = Alloc(1, 256)
    vi, vq, vw = lane_ids(a, va)
    a.I(f's_sub_u32 s40, s2, {base}')
    a.I('s_and_b32 s41, s40, 7')
    a.I('s_mul_i32 s41, s41, 14')
    a.I('s_lshr_b32 s42, s40, 3')
    a.I('s_add_u32 s41, s41, s42')
    a.I(f'v_readfirstlane_b32 s43, {vr(vw)}')
    a.srd(24, S_WS, WS_END)
    a.I('s_cmp_ge_u32 s43, 4')
    a.I('s_cbranch_scc1 FFN_DOWN')
    a.srd(28, S_GATE, 512 * 3584)
    a.srd(32, S_UP, 512 * 3584)
    voff, t0, t1 = va(), va(), va()
    a.I(f'v_bfe_u32 {vr(t0)}, v0, 1, 5')
    a.I(f'v_mul_u32_u24 {vr(voff)}, 3584, {vr(t0)}')
    a.I(f'v_and_b32 {vr(t0)}, 1, v0')
    a.I(f'v_lshl_add_u32 {vr(voff)}, {vr(t0)}, 4, {vr(voff)}')
    a.I(f's_mul_i32 s44, s43, {128 * 3584}')
    a.I('s_lshl_b32 s45, s41, 5')
    a.I('s_add_u32 s44, s44, s45')
    a.I('s_lshl_b32 s45, s43, 13')
    for ks in range(4):
        a.I(f's_add_u32 s46, s41, {ks}')
        a.I('s_and_b32 s46, s46, 3')
        a.I(f's_mul_i32 s47, s46, {32 * 3584}')
        a.I('s_add_u32 s47, s47, s44')
        a.I('s_lshl_b32 s46, s46, 10')
        a.I('s_add_u32 s46, s46, s45')
        for mat in range(2):
            a.I(f's_add_u32 m0, s46, {F_W + 4096 * mat}')
            a.I(f'buffer_load_dwordx4 {vr(voff)}, s[{28 + 4 * mat}:{31 + 4 * mat}], s47 offen lds')
    vlr, vk, vxo = va(), va(), va()
    a.I(f'v_lshlrev_b32 {vr(vlr)}, 13, {vr(vw)}')
    a.I(f'v_lshl_add_u32 {vr(vlr)}, {vr(vq)}, 8, {vr(vlr)}')
    a.I(f'v_lshl_add_u32 {vr(vlr)}, {vr(vi)}, 3, {vr(vlr)}')
    a.I(f'v_and_b32 {vr(vk)}, 63, v0')
    a.I(f'v_lshlrev_b32 {vr(vk)}, 4, {vr(vk)}')
    a.I(f'v_lshlrev_b32 {vr(vxo)}, 8, {vr(vw)}')
    a.I(f'v_lshl_add_u32 {vr(vxo)}, {vr(vq)}, 4, {vr(vxo)}')
    vlw = va()
    a.I(f'v_lshlrev_b32 {vr(vlw)}, 8, {vr(vw)}')
    a.I(f'v_lshl_add_u32 {vr(vlw)}, {vr(vi)}, 6, {vr(vlw)}')
    a.I(f'v_lshl_add_u32 {vr(vlw)}, {vr(vq)}, 4, {vr(vlw)}')
    a.I(f's_mov_b32 s46, 0x{WS_KEY:x}')
    a.I(f's_mov_b32 s47, 0x{WS_H2 - 254 * 1024:x}')
    a.I(f's_mov_b32 s48, {SPIN_MAX}')
    a.I('s_mov_b32 s50, 0xaaaaaaaa')
    a.I('s_mov_b32 s51, 0xaaaaaaaa')
    a.wait(vm=0)
    a.stamp()
    WF = [[va(4) for ks in range(4)] for mat in range(2)]
    for ks in range(4):
        for mat in range(2):
            for half in range(2):
                a.I(f'ds_read_b64_tr_b16 {vr(WF[mat][ks] + 2 * half, 2)}, {vr(vlr)} offset:{F_W + 4096 * mat + 1024 * ks + 128 * half}')
    a.full_wait()
    KY, KX = va(4), va(2)
    vkl = va()
    a.I(f'v_lshlrev_b32 {vr(vkl)}, 3, {vr(vk)}')
    a.I(f'v_min_u32 {vr(t0)}, {(NFILL - 1) * 128}, {vr(vkl)}')
    a.I(f'v_add_u32 {vr(t0)}, 0x{WS_FLAG + FLAG_F * 128:x}, {vr(t0)}')
    poll_flags(a, 'FFN_POLL_FILL', 24, t0, KY, 49)
    a.I(f's_mov_b32 s52, 0x{WS_KEY + 8192:x}')
    a.I(f's_mov_b32 s53, 0x{WS_KEY + 16384:x}')
    a.label('FFN_POLL_KEYS')
    a.I(f'buffer_load_dwordx2 {vr(KY, 2)}, {vr(vkl)}, s[24:27], s46 offen sc1')
    a.I(f'buffer_load_dwordx2 {vr(KY + 2, 2)}, {vr(vkl)}, s[24:27], s52 offen sc1')
    a.I(f'buffer_load_dword {vr(KX)}, off, s[24:27], s53 sc1')
    a.I('s_sub_u32 s48, s48, 1')
    a.I(f'v_min3_u32 {vr(t0)}, {vr(KY)}, {vr(KY + 1)}, {vr(KY + 2)}')
    a.I(f'v_min3_u32 {vr(t0)}, {vr(t0)}, {vr(KY + 3)}, {vr(KX)}')
    a.I(f'v_cmp_eq_u32 vcc, 0, {vr(t0)}')
    a.I('s_cselect_b64 vcc, 0, vcc')
    a.I('s_and_b64 exec, exec, vcc')
    a.I('s_cbranch_scc0 FFN_KEYS_OK')
    if POLL_SLEEP:
        a.I(f's_sleep {POLL_SLEEP}')
    a.I('s_branch FFN_POLL_KEYS')
    a.label('FFN_KEYS_OK')
    a.I('s_mov_b64 exec, -1')
    a.I(f's_mov_b32 s48, {SPIN_MAX}')
    a.stamp()
    m1, m2, o1, o2 = KY, KY + 1, KY + 2, KY + 3
    top2_merge(a, m1, m2, o1, o2, t1)
    for m in ('quad_perm:[1,0,3,2]', 'quad_perm:[2,3,0,1]', 'row_half_mirror', 'row_mirror'):
        a.I(f'v_mov_b32_dpp {vr(o1)}, {vr(m1)} {m} {DPP_ALL}')
        a.I(f'v_mov_b32_dpp {vr(o2)}, {vr(m2)} {m} {DPP_ALL}')
        top2_merge(a, m1, m2, o1, o2, t1)
    for sw in ('v_permlane16_swap_b32', 'v_permlane32_swap_b32'):
        a.I(f'v_mov_b32 {vr(o1)}, {vr(m1)}')
        a.I(f'v_mov_b32 {vr(o2)}, {vr(m2)}')
        a.I(f'{sw} {vr(m1)}, {vr(o1)}')
        a.I(f'{sw} {vr(m2)}, {vr(o2)}')
        top2_merge(a, m1, m2, o1, o2, t1)
    a.I(f'v_med3_u32 {vr(m2)}, {vr(m1)}, {vr(m2)}, {vr(KX)}')
    a.I(f'v_max_u32 {vr(m1)}, {vr(m1)}, {vr(KX)}')
    a.I(f'v_cndmask_b32_e64 {vr(o1)}, {vr(m1)}, {vr(m2)}, s[50:51]')
    a.I(f'v_and_b32 {vr(o1)}, 0x1ff, {vr(o1)}')
    a.I(f'v_lshl_add_u32 {vr(vxo)}, {vr(o1)}, 10, {vr(vxo)}')
    XB = va(16)
    D = [va(4), va(4)]
    a.stamp()
    a.full_wait()
    a.label('FFN_POLL_X')
    for ks in range(4):
        a.I(f'buffer_load_dwordx4 {vr(XB + 4 * ks, 4)}, {vr(vxo)}, s[24:27], s47 offen offset:{64 * ks} sc1')
    a.I('s_sub_u32 s48, s48, 1')
    a.I('s_cselect_b32 s49, 0, 1')
    for ks in range(4):
        for mat in range(2):
            a.I(f'v_mfma_f32_16x16x32_bf16 {vr(D[mat], 4)}, {vr(WF[mat][ks], 4)}, {vr(XB + 4 * ks, 4)}, {"0" if ks == 0 else vr(D[mat], 4)}')
        b = XB + 4 * ks
        if ks == 0:
            a.I(f'v_max3_u32 {vr(t0)}, {vr(b)}, {vr(b + 1)}, {vr(b + 2)}')
            a.I(f'v_max_u32 {vr(t0)}, {vr(t0)}, {vr(b + 3)}')
        else:
            a.I(f'v_max3_u32 {vr(t0)}, {vr(t0)}, {vr(b)}, {vr(b + 1)}')
            a.I(f'v_max3_u32 {vr(t0)}, {vr(t0)}, {vr(b + 2)}, {vr(b + 3)}')
    a.I(f'v_cmp_eq_u32 vcc, -1, {vr(t0)}')
    a.I('s_cmp_eq_u32 s49, 0')
    a.I('s_cselect_b64 vcc, 0, vcc')
    a.I('s_cmp_lg_u64 vcc, 0')
    a.I('s_cbranch_scc1 FFN_POLL_X')
    a.I(f's_mov_b32 s48, {SPIN_MAX}')
    a.I('s_mov_b32 exec_lo, 0x00030003')
    a.I('s_mov_b32 exec_hi, 0x00030003')
    for mat in range(2):
        a.I(f'ds_write_b128 {vr(vlw)}, {vr(D[mat], 4)} offset:{F_PART + 128 * mat}')
    a.I('s_mov_b64 exec, -1')
    a.stamp()
    a.wait(lg=0)
    a.I('s_barrier')
    a.I('s_lshl_b32 s52, s43, 6')
    a.I('s_add_u32 s52, s52, s40')
    a.I('s_cmp_ge_u32 s52, 64')
    a.I(f's_cbranch_scc1 {end_label}')
    a.srd(36, S_OUT, 2048 * 1024)
    a.I('s_cmp_ge_u32 s40, 32')
    a.I('s_cselect_b64 s[52:53], -1, 0')
    key, vd, dn = va(), va(), va()
    a.I(f'v_cndmask_b32_e64 {vr(key)}, {vr(m1)}, {vr(m2)}, s[52:53]')
    a.I(f'v_and_b32 {vr(vd)}, 0x1ff, {vr(key)}')
    a.I(f'v_lshlrev_b32 {vr(vd)}, 2, {vr(vd)}')
    a.I(f's_mov_b32 s54, 0x{WS_DONE - 254 * 4:x}')
    a.I('s_and_b32 s55, s40, 31')
    a.I('s_lshl_b32 s55, s55, 5')
    a.I(f's_add_u32 s56, s55, 0x{WS_TAB + 3072:x}')
    vc8 = va()
    a.I(f'v_and_b32 {vr(vc8)}, 3, v0')
    a.I(f'v_lshlrev_b32 {vr(vc8)}, 3, {vr(vc8)}')
    GBp, OLD = va(2), va(2)
    a.label('FFN_POLL_DONE')
    a.I(f'buffer_load_dword {vr(dn)}, {vr(vd)}, s[24:27], s54 offen sc1')
    a.I(f'buffer_load_dwordx2 {vr(GBp, 2)}, {vr(vc8)}, s[24:27], s56 offen sc1')
    a.I('s_sub_u32 s48, s48, 1')
    a.wait(vm=0)
    a.I(f'v_cmp_eq_u32 vcc, 0, {vr(dn)}')
    a.I('s_cselect_b64 vcc, 0, vcc')
    a.I('s_cmp_lg_u64 vcc, 0')
    a.I('s_cbranch_scc1 FFN_POLL_DONE')
    a.I(f's_mov_b32 s48, {SPIN_MAX}')
    vo = va()
    a.I(f'v_subrev_u32 {vr(vo)}, 1, {vr(dn)}')
    a.I(f'v_lshl_add_u32 {vr(vo)}, {vr(vo)}, 10, {vr(vc8)}')
    sig = va()
    a.I(f'v_ashrrev_i32 {vr(sig)}, 31, {vr(key)}')
    a.I(f'v_not_b32 {vr(sig)}, {vr(sig)}')
    a.I(f'v_or_b32 {vr(sig)}, 0x80000000, {vr(sig)}')
    a.I(f'v_xor_b32 {vr(sig)}, {vr(sig)}, {vr(key)}')
    a.I(f'v_mul_f32 {vr(sig)}, {lit(-LOG2E)}, {vr(sig)}')
    a.I(f'v_exp_f32 {vr(sig)}, {vr(sig)}')
    a.I(f'v_add_f32 {vr(sig)}, 1.0, {vr(sig)}')
    a.I(f'v_rcp_f32 {vr(sig)}, {vr(sig)}')
    G4 = va(4)
    for d in range(2):
        a.I(f'v_lshlrev_b32 {vr(G4 + 2 * d)}, 16, {vr(GBp + d)}')
        a.I(f'v_and_b32 {vr(G4 + 2 * d + 1)}, 0xffff0000, {vr(GBp + d)}')
    for d in range(4):
        a.I(f'v_mul_f32 {vr(G4 + d)}, {vr(G4 + d)}, {vr(sig)}')
    a.I('s_lshr_b32 s57, s40, 1')
    a.I(f's_mul_i32 s57, s57, {NF * 128}')
    a.I('s_and_b32 s58, s40, 1')
    a.I('s_lshl_b32 s58, s58, 6')
    a.I('s_add_u32 s57, s57, s58')
    a.I(f's_add_u32 s60, s57, 0x{WS_PART:x}')
    for jj in range(1, 4):
        a.I(f's_add_u32 s{60 + jj}, s60, {4096 * jj}')
    vpo = va()
    a.I(f'v_bfe_u32 {vr(vpo)}, v0, 2, 4')
    a.I(f'v_lshlrev_b32 {vr(vpo)}, 7, {vr(vpo)}')
    a.I(f'v_lshl_add_u32 {vr(vpo)}, {vr(vc8)}, 1, {vr(vpo)}')
    NL = NF // 16
    P = va(4 * NL)
    a.stamp()
    a.full_wait()
    a.label('FFN_POLL_PART')
    for jj in range(NL):
        a.I(f'buffer_load_dwordx4 {vr(P + 4 * jj, 4)}, {vr(vpo)}, s[24:27], s{60 + jj // 2} offen offset:{2048 * (jj % 2)} sc1')
    a.I(f'buffer_load_dwordx2 {vr(OLD, 2)}, {vr(vo)}, s[36:39], s55 offen sc1')
    a.I('s_sub_u32 s48, s48, 1')
    for jj in range(NL):
        b = P + 4 * jj
        if jj == 0:
            a.I(f'v_max3_u32 {vr(t0)}, {vr(b)}, {vr(b + 1)}, {vr(b + 2)}')
            a.I(f'v_max_u32 {vr(t0)}, {vr(t0)}, {vr(b + 3)}')
        else:
            a.I(f'v_max3_u32 {vr(t0)}, {vr(t0)}, {vr(b)}, {vr(b + 1)}')
            a.I(f'v_max3_u32 {vr(t0)}, {vr(t0)}, {vr(b + 2)}, {vr(b + 3)}')
            for d in range(4):
                a.I(f'v_add_f32 {vr(P + d)}, {vr(P + d)}, {vr(b + d)}')
    a.wait(vm=0)
    a.I(f'v_cmp_eq_u32 vcc, -1, {vr(t0)}')
    a.I('s_cselect_b64 vcc, 0, vcc')
    a.I('s_cmp_lg_u64 vcc, 0')
    a.I('s_cbranch_scc1 FFN_POLL_PART')
    a.stamp()
    for ror in (4, 8):
        for d in range(4):
            a.I(f'v_add_f32_dpp {vr(P + d)}, {vr(P + d)}, {vr(P + d)} row_ror:{ror} {DPP_ALL}')
    for sw in ('v_permlane16_swap_b32', 'v_permlane32_swap_b32'):
        for d in range(4):
            a.I(f'v_mov_b32 {vr(P + 4 + d)}, {vr(P + d)}')
        for d in range(4):
            a.I(f'{sw} {vr(P + d)}, {vr(P + 4 + d)}')
        for d in range(4):
            a.I(f'v_add_f32 {vr(P + d)}, {vr(P + d)}, {vr(P + 4 + d)}')
    for d in range(2):
        a.I(f'v_lshlrev_b32 {vr(P + 8 + 2 * d)}, 16, {vr(OLD + d)}')
        a.I(f'v_and_b32 {vr(P + 9 + 2 * d)}, 0xffff0000, {vr(OLD + d)}')
    for d in range(4):
        a.I(f'v_fmac_f32 {vr(P + 8 + d)}, {vr(P + d)}, {vr(G4 + d)}')
    for d in range(2):
        a.I(f'v_cvt_pk_bf16_f32 {vr(OLD + d)}, {vr(P + 8 + 2 * d)}, {vr(P + 9 + 2 * d)}')
    a.I('s_mov_b64 exec, 15')
    a.I(f'buffer_store_dwordx2 {vr(OLD, 2)}, {vr(vo)}, s[36:39], s55 offen sc1')
    a.I(f'v_mov_b32 {vr(P)}, s{S_TAG}')
    a.I(f'v_mov_b32 {vr(P + 1)}, s{S_TAG + 1}')
    a.I('s_cmp_eq_u32 s40, 0')
    a.I(f's_mov_b32 s59, 0x{WS_EPOCH:x}')
    a.I('s_cselect_b32 s59, s59, 0x7fff0000')
    a.I('s_mov_b64 exec, 1')
    a.I(f'buffer_store_dwordx2 {vr(P, 2)}, off, s[24:27], s59 sc1')
    a.stamp_flush()
    a.I('s_endpgm')

    a.label('FFN_DOWN')
    a.nstamp = 2
    va = Alloc(vw + 1, 256)
    a.srd(28, S_DOWN, 1792 * 1024)
    vod, t0, t1 = va(), va(), va()
    a.I(f'v_and_b32 {vr(t0)}, 3, {vr(vw)}')
    a.I(f'v_lshlrev_b32 {vr(vod)}, 12, {vr(vq)}')
    a.I(f'v_lshl_add_u32 {vr(vod)}, {vr(t0)}, 8, {vr(vod)}')
    a.I(f'v_lshl_add_u32 {vr(vod)}, {vr(vi)}, 4, {vr(vod)}')
    a.I('s_lshl_b32 s44, s41, 14')
    WD = va(16)
    for j in range(4):
        a.I(f'buffer_load_dwordx4 {vr(WD + 4 * j, 4)}, {vr(vod)}, s[28:31], s44 offen offset:{1024 * j}')
    a.I('s_mov_b32 s52, 0x05040100')
    a.I('s_mov_b32 s53, 0x07060302')
    vl, vst = va(), va()
    a.I(f'v_bfe_u32 {vr(t1)}, {vr(vi)}, 2, 1')
    a.I(f'v_lshlrev_b32 {vr(vl)}, 6, {vr(t1)}')
    a.I(f'v_lshl_add_u32 {vr(vl)}, {vr(vq)}, 4, {vr(vl)}')
    a.I(f'v_and_b32 {vr(t1)}, 1, {vr(vq)}')
    a.I(f'v_lshlrev_b32 {vr(vst)}, 4, {vr(t1)}')
    a.I(f'v_lshl_add_u32 {vr(vst)}, {vr(t0)}, 2, {vr(vst)}')
    a.I(f'v_lshrrev_b32 {vr(t0)}, 2, {vr(vi)}')
    a.I(f'v_add_u32 {vr(vst)}, {vr(vst)}, {vr(t0)}')
    a.I(f'v_mul_u32_u24 {vr(vst)}, {NF * 128}, {vr(vst)}')
    a.I(f'v_and_b32 {vr(t1)}, 3, {vr(vi)}')
    a.I(f'v_lshl_add_u32 {vr(vst)}, {vr(t1)}, 5, {vr(vst)}')
    a.I(f'v_lshrrev_b32 {vr(t1)}, 1, {vr(vq)}')
    a.I(f'v_lshl_add_u32 {vr(vst)}, {vr(t1)}, 4, {vr(vst)}')
    a.I('s_lshl_b32 s45, s40, 7')
    a.I(f's_add_u32 s45, s45, 0x{WS_PART:x}')
    a.I('s_mov_b32 s46, 0')
    a.I('s_mov_b32 s47, -1')
    BD = va(16)
    for c in range(8):
        for m in range(2):
            a.I(f'v_perm_b32 {vr(BD + 2 * c + m)}, {vr(WD + 4 * (2 * m + 1) + c // 2)}, {vr(WD + 4 * (2 * m) + c // 2)}, s{52 + c % 2}')
    a.stamp()
    a.I('s_barrier')
    a.stamp()
    R = va(32)
    for w in range(4):
        for mat in range(2):
            a.I(f'ds_read_b128 {vr(R + 8 * w + 4 * mat, 4)}, {vr(vl)} offset:{F_PART + 256 * w + 128 * mat}')
    for d in range(8):
        a.I(f'v_add_f32 {vr(R + d)}, {vr(R + d)}, {vr(R + 8 + d)}')
    for d in range(8):
        a.I(f'v_add_f32 {vr(R + 16 + d)}, {vr(R + 16 + d)}, {vr(R + 24 + d)}')
    for d in range(8):
        a.I(f'v_add_f32 {vr(R + d)}, {vr(R + d)}, {vr(R + 16 + d)}')
    E = R + 8
    for d in range(4):
        a.I(f'v_mul_f32 {vr(E + d)}, {lit(-LOG2E)}, {vr(R + d)}')
    for d in range(4):
        a.I(f'v_exp_f32 {vr(E + d)}, {vr(E + d)}')
    for d in range(4):
        a.I(f'v_mul_f32 {vr(R + d)}, {vr(R + d)}, {vr(R + 4 + d)}')
    for d in range(4):
        a.I(f'v_add_f32 {vr(E + d)}, 1.0, {vr(E + d)}')
    for d in range(4):
        a.I(f'v_rcp_f32 {vr(E + d)}, {vr(E + d)}')
    for d in range(4):
        a.I(f'v_mul_f32 {vr(R + d)}, {vr(R + d)}, {vr(E + d)}')
    XA = va(2)
    for d in range(2):
        a.I(f'v_cvt_pk_bf16_f32 {vr(XA + d)}, {vr(R + 2 * d)}, {vr(R + 2 * d + 1)}')
    D = va(32)
    for c in (0, 4, 1, 5, 2, 6, 3, 7):
        a.I(f'v_mfma_f32_16x16x16_bf16 {vr(D + 4 * c, 4)}, {vr(XA, 2)}, {vr(BD + 2 * c, 2)}, 0')
    O = R + 16
    for c in range(4):
        a.I(f'v_cndmask_b32_e64 {vr(O + c)}, {vr(D + 4 * c)}, {vr(D + 4 * c + 16)}, s[46:47]')
    a.I(f'buffer_store_dwordx4 {vr(O, 4)}, {vr(vst)}, s[24:27], s45 offen sc1')


def fused(a):
    name = NAME + '_kernel'
    NWG = 128 + 96 + NFILL
    a.begin_kernel(name)
    a.I(f's_cmp_ge_u32 s2, {NWG}')
    a.I('s_cbranch_scc1 L_END')
    load_args(a)
    a.stamp_init(0)
    a.I('s_cmp_ge_u32 s2, 128')
    a.I('s_cbranch_scc1 L_MOD')
    role_k1_main(a)
    a.st.vm.clear()
    a.wait(lg=0)
    a.label('L_ROWS')
    role_rows(a)
    a.stamp_flush(drain=False)
    a.I('s_endpgm')
    a.label('L_MOD')
    a.I('s_cmp_ge_u32 s2, 224')
    a.I('s_cbranch_scc0 L_MOD2')
    role_fill(a, 224, NFILL)
    a.I('s_cmp_lt_u32 s2, 240')
    a.I('s_cbranch_scc1 L_FFN')
    a.I('s_mov_b32 s2, 128')
    a.I('s_branch L_ROWS')
    a.label('L_MOD2')
    role_mod(a, 128, 'L_MOD3')
    a.label('L_MOD3')
    a.I('s_barrier')
    a.label('L_FFN')
    a.nstamp = 2
    role_ffn(a, 128, 'L_END')
    a.stamp_flush()
    a.label('L_END', end_only=True)
    a.I('s_endpgm')
    return name, (NWG, 512, LDS2 + 44 * 1024), a.desc(name)


def build(path, stamps=False, sleep=2, as_list=False, out_sc=' sc1'):
    global POLL_SLEEP, OUT_SC
    OUT_SC = out_sc
    POLL_SLEEP = sleep
    a = Asm()
    a.stamps_on = stamps
    name, (g, b, lds), desc = fused(a)
    head = ['; generated by work/gen3.py']
    head.append(f'; @launch {"kernel=" + name + " " if as_list else ""}grid=({g},1,1) block=({b},1,1) lds={lds}')
    head += ['.amdgcn_target "amdgcn-amd-amdhsa--gfx950"', '.text']
    open(path, 'w').write('\n'.join(head + a.out + ['.section .rodata,"a"', desc]) + '\n')


if __name__ == '__main__':
    out = sys.argv[1] if len(sys.argv) > 1 else f'cdna_kernels/{NAME}.s'
    opts = sys.argv[2:]
    sl = [int(o[6:]) for o in opts if o.startswith('sleep=')]
    build(out, 'stamps' in opts, sl[0] if sl else 2, 'list' in opts, '' if 'plainout' in opts else ' sc1')
```
